```python
import torch

def _softmax(x, axis=-1):
    return torch.softmax(x, dim=axis)
def _gelu(x):
    return torch.nn.functional.gelu(x, approximate="tanh")
def _silu(x):
    return torch.nn.functional.silu(x)
def _sigmoid(x):
    return torch.sigmoid(x)
def _layernorm(x, axis=-1, eps=1e-5):
    m = x.mean(dim=axis, keepdim=True)
    v = x.var(dim=axis, keepdim=True, unbiased=False)
    return (x - m) / torch.sqrt(v + eps)
def _scatter_add(tgt, idx, src, axis=0):
    return tgt.clone().index_add_(axis, idx, src)
def _segment_sum(src, seg, n):
    out = torch.zeros((n,) + src.shape[1:], dtype=src.dtype)
    return out.index_add_(0, seg, src)
def _pad(x, pw):
    flat = tuple(v for pair in reversed(pw) for v in pair)
    return torch.nn.functional.pad(x, flat)

kernel_name = 'parallel_sum__ssm_conv_s4__mixer_channel_mlp__prompt'

def setup_inputs():

    _w = (lambda a: (lambda t: t.to(torch.bfloat16) if t.is_floating_point() else t)(torch.as_tensor(a)))
    def _A_setup():
        B, L, D, N = 1, 2048, 448, 256
        A_re = -(lambda _x: torch.exp(torch.as_tensor(_x)))((lambda *s: torch.randn(*s, dtype=torch.bfloat16) * 3.2)(D, N))
        A_im = torch.pi * (lambda *s: torch.randn(*s, dtype=torch.bfloat16) * 0.05)(D, N)
        B_re = (lambda *s: torch.randn(*s, dtype=torch.bfloat16) * 0.1)(D, N)
        B_im = (lambda *s: torch.randn(*s, dtype=torch.bfloat16) * 0.1)(D, N)
        C_re = (lambda *s: torch.randn(*s, dtype=torch.bfloat16) * 0.1)(D, N)
        C_im = (lambda *s: torch.randn(*s, dtype=torch.bfloat16) * 0.1)(D, N)
        log_dt = (lambda *s: torch.randn(*s, dtype=torch.bfloat16) * 0.05)(D) * 0.5 - 4.0
        Dskip = (lambda *s: torch.randn(*s, dtype=torch.bfloat16) * 0.05)(D)
        return {
            "u": _w((lambda *s: torch.randn(*s, dtype=torch.bfloat16) * 0.05)(B, L, D)),
            "A_re": _w(A_re),
            "A_im": _w(A_im),
            "B_re": _w(B_re),
            "B_im": _w(B_im),
            "C_re": _w(C_re),
            "C_im": _w(C_im),
            "log_dt": _w(log_dt),
            "Dskip": _w(Dskip),
        }
    _A_in = _A_setup()

    def _B_setup():
        B, S, D, F = 1, 2048, 448, 1792
        return {
            "x": _w((lambda *s: torch.randn(*s, dtype=torch.bfloat16) * 0.05)(B, S, D)),
            "w1": _w((lambda *s: torch.randn(*s, dtype=torch.bfloat16) * 3.2)(D, F) * (D ** -0.5)),
            "b1": _w((lambda *s: torch.randn(*s, dtype=torch.bfloat16) * 0.8)(F)),
            "w2": _w((lambda *s: torch.randn(*s, dtype=torch.bfloat16) * 0.05)(F, D) * (F ** -0.5)),
            "b2": _w((lambda *s: torch.randn(*s, dtype=torch.bfloat16) * 0.05)(D)),
        }
    _B_in = _B_setup()

    return {
        "A_u": _A_in["u"],
        "A_A_re": _A_in["A_re"],
        "A_A_im": _A_in["A_im"],
        "A_B_re": _A_in["B_re"],
        "A_B_im": _A_in["B_im"],
        "A_C_re": _A_in["C_re"],
        "A_C_im": _A_in["C_im"],
        "A_log_dt": _A_in["log_dt"],
        "A_Dskip": _A_in["Dskip"],
        "B_x": _B_in["x"],
        "B_w1": _B_in["w1"],
        "B_b1": _B_in["b1"],
        "B_w2": _B_in["w2"],
        "B_b2": _B_in["b2"],
    }

def reference(A_u, A_A_re, A_A_im, A_B_re, A_B_im, A_C_re, A_C_im, A_log_dt, A_Dskip, B_x, B_w1, B_b1, B_w2, B_b2):
    def _A_ref(u, A_re, A_im, B_re, B_im, C_re, C_im, log_dt, Dskip):
        Bsz, L, D = u.shape
        dt = torch.exp(log_dt)[:, None]
        A = A_re + 1j * A_im
        Bc = B_re + 1j * B_im
        Cc = C_re + 1j * C_im
        logdA = dt * A
        dB = dt * Bc
        l = (lambda x, dt: x.to(dt))(torch.arange(L), A_re.dtype)
        P = torch.exp(logdA[:, :, None] * l[None, None, :])
        K = torch.einsum("dn,dnl,dn->dl", Cc, P, dB).real
        L2 = 2 * L
        Kp = _pad(K, ((0, 0), (0, L)))
        up = (lambda x, *d: x.permute(*d))(u, 0, 2, 1)
        up = _pad(up, ((0, 0), (0, 0), (0, L)))
        Kf = (lambda x, axes=(-2,-1): torch.fft.rfft2(x.float(), dim=axes))(Kp[:, None, :], axes=(-2, -1))
        Uf = (lambda x, axes=(-2,-1): torch.fft.rfft2(x.float(), dim=axes))(up[:, :, None, :], axes=(-2, -1))
        Yf = Uf * Kf[None, :, :, :]
        y = (lambda x, s, axes=(-2,-1): torch.fft.irfft2(x, s=s, dim=axes).to(torch.bfloat16))(Yf, (1, L2), axes=(-2, -1))[:, :, 0, :L]
        y = (lambda x, *d: x.permute(*d))(y, 0, 2, 1) + u * Dskip[None, None, :]
        return y

    def _B_ref(x, w1, b1, w2, b2):
        y = _layernorm(x, axis=-1)
        h = _gelu(torch.einsum("bsd,df->bsf", y, w1) + b1)
        return torch.einsum("bsf,fd->bsd", h, w2) + b2

    x = A_u
    xn = _layernorm(x, axis=-1)
    return x + _A_ref(xn, A_A_re, A_A_im, A_B_re, A_B_im, A_C_re, A_C_im, A_log_dt, A_Dskip) + _B_ref(xn, B_w1, B_b1, B_w2, B_b2)
```

```python
import struct, os
SC = os.environ.get('SC', '')
NAME = "parallel_sum__ssm_conv_s4__mixer_channel_mlp__prompt"
Y2F = 0x0
XNT = 0x1C0000
W1F = 0x380000
W2F = 0x508000
KR  = 0x690000
KRP = 4160
HF  = 0x860000
YAT = 0xF60000
CNT = 0x1120000
WS_END = 0x1121000
C1N = int(os.environ.get('C1N', '256'))

def f2u(x):
    return struct.unpack("<I", struct.pack("<f", x))[0]
def fl(x):
    return "0x%08x" % f2u(x)

class Asm:
    def __init__(self):
        self.lines = []
    def __call__(self, s):
        for l in s.strip("\n").split("\n"):
            l = l.strip()
            if l.startswith("buffer_store") and SC:
                l += " " + SC
            self.lines.append("    " + l)
    def label(self, l):
        self.lines.append(l + ":")
    def raw(self, s):
        self.lines.append(s)
    def text(self):
        return "\n".join(self.lines) + "\n"

def vr(b, n=4):
    return "v[%d:%d]" % (b, b + n - 1)

def srd(a, d, lo, nbytes):
    a(f"s_mov_b32 s{d}, s{lo}")
    a(f"s_and_b32 s{d+1}, s{lo+1}, 0xffff")
    a(f"s_mov_b32 s{d+2}, 0x{nbytes:x}")
    a(f"s_mov_b32 s{d+3}, 0x00020000")

def kdesc(name, vgpr, sgpr=102):
    acc = (vgpr + 3) // 4 * 4
    return f""".p2align 6
.amdhsa_kernel {name}
  .amdhsa_next_free_vgpr {vgpr}
  .amdhsa_next_free_sgpr {sgpr}
  .amdhsa_accum_offset {acc}
  .amdhsa_group_segment_fixed_size 0
  .amdhsa_kernarg_size 136
  .amdhsa_user_sgpr_count 2
  .amdhsa_user_sgpr_kernarg_segment_ptr 1
  .amdhsa_system_sgpr_workgroup_id_x 1
.end_amdhsa_kernel
"""
def khead(name):
    return f""".globl {name}
.p2align 8
.type {name},@function
{name}:
"""

import os
STAMP = os.environ.get("STAMP", "")
class Stamper:
    def __init__(self, a, on):
        self.a = a; self.on = on; self.n = 0
    def __call__(self):
        if self.on:
            self.a(f"s_memtime s[{64+2*self.n}:{65+2*self.n}]"); self.n += 1
            assert self.n <= 14
    def dump(self, wgreg, wg, wavereg, wave, lab):
        if not self.on: return
        a = self.a
        a(f"s_cmp_eq_u32 {wgreg}, {wg}")
        a(f"s_cbranch_scc0 {lab}")
        a(f"s_cmp_eq_u32 {wavereg}, {wave}")
        a(f"s_cbranch_scc0 {lab}")
        a("s_load_dwordx2 s[94:95], s[0:1], 120")
        a("s_waitcnt lgkmcnt(0)")
        a("v_mov_b32 v1, 0")
        for i in range(self.n):
            a(f"s_sub_u32 s93, s{64+2*i}, s64")
            a("v_mov_b32 v2, s93")
            a(f"global_store_dword v1, v2, s[94:95] offset:{4*i}")

RT = os.environ.get("RT", "") == "1"
RTBASE = 0x1200000
def rt_start(a):
    if RT: a("s_memrealtime s[96:97]")
def rt_end(a, kidx):
    if not RT: return
    a("s_waitcnt vmcnt(0)")
    a("s_memrealtime s[98:99]")
    a("s_load_dwordx2 s[94:95], s[0:1], 128")
    a("s_waitcnt lgkmcnt(0)")
    a("v_cmp_eq_u32 vcc, 0, v0")
    a("s_and_saveexec_b64 s[92:93], vcc")
    a(f"s_cbranch_execz L_rt{kidx}")
    a("s_lshl_b32 s93, s2, 3")
    a(f"s_add_u32 s93, s93, 0x{RTBASE + kidx*8192:x}")
    a("v_mov_b32 v1, s93")
    a("v_mov_b32 v2, s96")
    a("v_mov_b32 v3, s98")
    a("global_store_dwordx2 v1, v[2:3], s[94:95]")
    a.label(f"L_rt{kidx}")
```

```python
from gen_common import *
LOG2E = 1.4426950408889634
INV2PI = 0.15915494309189535


def pr(z): return f"v[{z[0]}:{z[1]}]"
def cmul(a, z, x, y):
    a(f"v_pk_mul_f32 {pr(z)}, {pr(x)}, {pr(y)} op_sel:[0,0] op_sel_hi:[0,1]")
    a(f"v_pk_fma_f32 {pr(z)}, {pr(x)}, {pr(y)}, {pr(z)} op_sel:[1,1,0] op_sel_hi:[1,0,1] neg_lo:[1,0,0]")

def gen_kgen(a, st):
    a.label("L_kgen")
    a("s_lshl_b32 s3, s2, 9")
    a("v_lshl_add_u32 v1, v0, 1, s3")
    a("s_lshl_b32 s4, s2, 1")
    a("v_mov_b32 v2, s4")
    a("global_load_ushort v3, v2, s[30:31]")
    for i, p in enumerate([1, 2, 3, 4, 5, 6]):
        a(f"global_load_ushort v{4+i}, v1, s[{16+2*p}:{17+2*p}]")
    a("v_lshlrev_b32 v16, 2, v0")
    for k in range(1, 16):
        a(f"v_xor_b32 v{16+k}, {k<<4}, v16")
    a(f"s_mov_b32 s4, {fl(LOG2E)}")
    a(f"s_mov_b32 s5, {fl(INV2PI)}")
    a("v_lshrrev_b32 v1, 6, v0")
    a("s_waitcnt vmcnt(6)")
    a("v_lshlrev_b32 v3, 16, v3")
    a("v_readfirstlane_b32 s7, v1")
    a("v_mul_f32 v3, s4, v3")
    a("v_exp_f32 v3, v3")
    a("s_nop 0")
    a("v_cvt_pk_bf16_f32 v3, v3, v3")
    a("v_lshlrev_b32 v2, 16, v3")
    a("s_waitcnt vmcnt(0)")
    st.n = 2; st()
    for i in range(6):
        a(f"v_lshlrev_b32 v{4+i}, 16, v{4+i}")
    a("v_pk_mul_f32 v[4:5], v[4:5], v[2:3] op_sel_hi:[1,0]")
    a("v_pk_mul_f32 v[6:7], v[6:7], v[2:3] op_sel_hi:[1,0]")
    a("v_pk_mul_f32 v[4:5], v[4:5], s[4:5]")
    nxt = [32]
    def newp():
        p = (nxt[0], nxt[0] + 1); nxt[0] += 2; return p
    def direct(e):
        z = newp(); t = newp()
        if e == 1:
            a(f"v_exp_f32 v{t[0]}, v4")
            a(f"v_fract_f32 v{t[1]}, v5")
        else:
            a(f"v_mul_f32 v{t[0]}, {fl(float(e))}, v4")
            a(f"v_mul_f32 v{t[1]}, {fl(float(e))}, v5")
            a(f"v_exp_f32 v{t[0]}, v{t[0]}")
            a(f"v_fract_f32 v{t[1]}, v{t[1]}")
        a(f"v_cos_f32 v{z[0]}, v{t[1]}")
        a(f"v_sin_f32 v{z[1]}, v{t[1]}")
        a("s_nop 0")
        a(f"v_pk_mul_f32 {pr(z)}, {pr(z)}, {pr(t)} op_sel_hi:[1,0]")
        return z
    tcnt = [0]
    HE = 112
    HFh = 116
    def putE(r, z):
        if r < 4:
            a(f"v_cvt_pk_bf16_f32 v{HE+r}, v{z[0]}, v{z[1]}")
        else:
            t = 10 + (tcnt[0] % 4); tcnt[0] += 1
            a(f"v_cvt_pk_bf16_f32 v{t}, v{z[0]}, v{z[1]}")
            if r < 16:
                a(f"ds_write_b32 v{16+r}, v{t} offset:{r*1024}")
            else:
                a(f"ds_write2st64_b32 v{16+(r&15)}, v{HE+r-16}, v{t} offset0:{(r-16)*4} offset1:{r*4}")
    def putF(i, z):
        if i < 16:
            a(f"v_cvt_pk_bf16_f32 v{HFh+i}, v{z[0]}, -v{z[1]}")
        else:
            t = 10 + (tcnt[0] % 4); tcnt[0] += 1
            a(f"v_cvt_pk_bf16_f32 v{t}, v{z[0]}, -v{z[1]}")
            a(f"ds_write2st64_b32 v{16+(i&15)}, v{HFh+i-16}, v{t} offset0:{(20+i-16)*4} offset1:{(20+i)*4}")
    def mul(x, y):
        z = newp(); cmul(a, z, x, y); return z
    z1 = direct(1); z8 = direct(8); z256 = direct(256)
    W = mul((8, 9), (6, 7))
    a(f"v_mov_b32 v{HE}, 0x3f80")
    putE(1, z1)
    z16 = mul(z8, z8); z2 = mul(z1, z1)
    putF(0, W)
    F = [W, mul(W, z8)]
    putE(2, z2)
    z24 = mul(z16, z8); z32 = mul(z16, z16)
    z3 = mul(z2, z1); z4 = mul(z2, z2)
    putF(1, F[1])
    F.append(mul(W, z16)); F.append(mul(W, z24))
    putE(3, z3); putE(4, z4)
    z5 = mul(z4, z1); z6 = mul(z4, z2); z7 = mul(z4, z3)
    putF(2, F[2]); putF(3, F[3])
    z512 = mul(z256, z256)
    putE(5, z5); putE(6, z6); putE(7, z7); putE(8, z256)
    cur = [newp() for _ in range(4)]; alt = [newp() for _ in range(4)]
    state = {"src": list(F)}
    def fstep(i0):
        dst = cur if state["src"] is not cur else alt
        for c in range(4):
            cmul(a, dst[c], state["src"][c], z32)
        return dst
    def fput(i0, dst):
        for c in range(4):
            putF(i0 + c, dst[c])
        state["src"] = dst
    e9 = mul(z256, z2); e10 = mul(z256, z4); e11 = mul(z256, z6)
    d = fstep(4)
    z768 = mul(z512, z256); z1024 = mul(z512, z512); e13 = mul(z512, z4)
    putE(9, e9); putE(10, e10); putE(11, e11); putE(12, z512)
    fput(4, d); d = fstep(8)
    e15 = mul(z768, z4); z1280 = mul(z1024, z256); z1536 = mul(z1024, z512); z1792 = mul(z1024, z768); z2048 = mul(z1024, z1024)
    putE(13, e13); putE(14, z768); putE(16, z1024)
    fput(8, d); d = fstep(12)
    a(f"v_mul_f32 v14, v{W[0]}, v{z2048[0]}")
    a(f"v_fma_f32 v14, -v{W[1]}, v{z2048[1]}, v14")
    putE(15, e15); putE(17, z1280); putE(18, z1536); putE(19, z1792)
    fput(12, d)
    dpp = [f"row_shr:{sh} row_mask:0xf bank_mask:0xf bound_ctrl:0" for sh in (1, 2, 4, 8)] + ["row_bcast:15 row_mask:0xa bank_mask:0xf", "row_bcast:31 row_mask:0xc bank_mask:0xf"]
    for q, i0 in enumerate((16, 20, 24, 28)):
        d = fstep(i0)
        a(f"v_add_f32_dpp v14, v14, v14 {dpp[q]}")
        fput(i0, d)
    assert nxt[0] <= 112, nxt[0]
    a("v_and_b32 v2, 15, v0")
    a("v_bfe_u32 v3, v0, 4, 2")
    a(f"v_add_f32_dpp v14, v14, v14 {dpp[4]}")
    a("s_lshr_b32 s8, s7, 1")
    a("s_and_b32 s9, s7, 1")
    a("s_lshl_b32 s10, s8, 14")
    a("s_lshl_b32 s11, s9, 14")
    a(f"s_add_u32 s11, s11, {20*1024}")
    a("v_lshlrev_b32 v4, 10, v2")
    a(f"v_add_f32_dpp v14, v14, v14 {dpp[5]}")
    a("v_xor_b32 v5, v3, v2")
    a("s_lshl_b32 s12, s7, 2")
    a("v_mov_b32 v15, s12")
    for tl in range(4):
        a(f"v_xor_b32 v6, {4*tl}, v5")
        a(f"v_lshl_add_u32 v6, v6, 4, v4")
        a(f"v_add_u32 v{16+tl}, s10, v6")
        a(f"v_add_u32 v{20+tl}, s11, v6")
    a("s_mov_b64 s[14:15], exec")
    a("s_mov_b32 exec_lo, 0")
    a("s_mov_b32 exec_hi, 0x80000000")
    a("ds_write_b32 v15, v14 offset:53248")
    a("s_mov_b64 exec, s[14:15]")
    st()
    a("s_waitcnt lgkmcnt(0)")
    a("s_barrier")
    st()
    def issue(b):
        base = 32 + (b & 1) * 32
        for tl in range(4):
            a(f"ds_read_b128 {vr(base+8*tl)}, v{16+tl} offset:{256*b}")
            a(f"ds_read_b128 {vr(base+8*tl+4)}, v{20+tl} offset:{256*b}")
    def mm(b):
        base = 32 + (b & 1) * 32
        for tl in range(4):
            c = "0" if (b == 0 and tl == 0) else vr(24)
            a(f"v_mfma_f32_16x16x32_bf16 {vr(24)}, {vr(base+8*tl)}, {vr(base+8*tl+4)}, {c}")
    a("v_mov_b32 v15, 0")
    a("ds_read_b128 v[112:115], v15 offset:53248")
    issue(0); issue(1)
    D = 2304
    a("v_cmp_eq_u32 s[52:53], 1, v3")
    a("v_cmp_eq_u32 s[54:55], 2, v3")
    a("v_cmp_eq_u32 s[56:57], 3, v3")
    a("s_cmp_eq_u32 s8, 0")
    base0 = [0, 4, 256, 512]; step0 = [1, 1, 2, 4]
    base1 = [1024, D, D, D]; step1 = [256, 0, 0, 0]
    for g in range(4):
        a(f"s_mov_b32 s12, {2*base0[g]}")
        a(f"s_cselect_b32 s{32+g}, s12, {2*base1[g]}")
        a(f"s_mov_b32 s12, {2*step0[g]}")
        a(f"s_cselect_b32 s{36+g}, s12, {2*step1[g]}")
    a("s_cselect_b32 s40, 496, 0")
    a("s_lshl_b32 s13, s9, 8")
    a("v_lshl_add_u32 v8, v2, 4, s13")
    a("v_mov_b32 v100, s32\nv_mov_b32 v104, s36")
    for g, m in ((1, "s[52:53]"), (2, "s[54:55]"), (3, "s[56:57]")):
        a(f"v_mov_b32 v9, s{32+g}")
        a(f"v_mov_b32 v10, s{36+g}")
        a(f"v_cndmask_b32 v100, v100, v9, {m}")
        a(f"v_cndmask_b32 v104, v104, v10, {m}")
    a("v_mov_b32 v9, s40")
    a("v_cndmask_b32 v9, 0, v9, s[56:57]")
    a("v_add_u32 v100, v100, v8")
    a("v_add_u32 v101, v100, v104")
    a("v_add3_u32 v102, v101, v104, v9")
    a("v_add_u32 v103, v102, v104")
    a("s_waitcnt lgkmcnt(8)"); mm(0); issue(2)
    a("v_add_f32 v112, v112, v113\nv_add_f32 v114, v114, v115\nv_add_f32 v112, v112, v114")
    a("v_cvt_pk_bf16_f32 v112, v112, v112")
    a("s_waitcnt lgkmcnt(8)"); mm(1); issue(3)
    a("v_lshlrev_b32 v8, 4, v0")
    a("v_sub_u32 v104, 4094, v8")
    a("v_cvt_f32_u32 v104, v104")
    for j in range(1, 8):
        a(f"v_add_f32 v{104+j}, {fl(-2.0*j)}, v104")
    for p in range(4):
        a(f"v_cvt_pk_bf16_f32 v9, v{104+2*p}, v{105+2*p}")
        a(f"v_lshlrev_b32 v{104+2*p}, 16, v9")
        a(f"v_and_b32 v{105+2*p}, 0xffff0000, v9")
    for j in range(8):
        a(f"v_cvt_u32_f32 v{104+j}, v{104+j}")
    a("s_waitcnt lgkmcnt(8)"); mm(2)
    a("s_waitcnt lgkmcnt(0)"); mm(3)
    a("s_barrier")
    st()
    a(f"s_mul_i32 s12, s2, {KRP}")
    a(f"s_add_u32 s12, s12, 0x{KR:x}")
    a("v_mov_b32 v32, 0\nv_mov_b32 v33, 0\nv_mov_b32 v34, 0\nv_mov_b32 v35, 0")
    a("ds_write_b16 v15, v112 offset:4096")
    a("s_nop 0")
    a("v_cvt_pk_bf16_f32 v28, v24, v25")
    a("v_cvt_pk_bf16_f32 v29, v26, v27")
    a("ds_write_b16 v100, v28")
    a("ds_write_b16_d16_hi v101, v28")
    a("ds_write_b16 v102, v29")
    a("ds_write_b16_d16_hi v103, v29")
    a("s_waitcnt lgkmcnt(0)")
    a("s_barrier")
    for p in range(8):
        a(f"ds_read_u16 v{36+p}, v{104+p}")
    a("s_waitcnt lgkmcnt(0)")
    for p in range(4):
        a(f"v_lshl_or_b32 v{28+p}, v{37+2*p}, 16, v{36+2*p}")
    a("buffer_store_dwordx4 v[28:31], v8, s[80:83], s12 offen")
    st()
    if st.on:
        a("s_waitcnt vmcnt(0)")
        st()
        st.dump("s2", int(os.environ.get("SWG", "0")), "s7", 0, "L_kg_nd")
        a.label("L_kg_nd")
    a("v_cmp_gt_u32 vcc, 4, v0")
    a("s_and_saveexec_b64 s[14:15], vcc")
    a("s_cbranch_execz L_end1")
    a("s_add_u32 s12, s12, 4096")
    a("buffer_store_dwordx4 v[32:35], v8, s[80:83], s12 offen")
    a("s_branch L_end1")

def wave_reduce(a, regs, sdst):
    for sh in (1, 2, 4, 8):
        for r in regs:
            a(f"v_add_f32_dpp v{r}, v{r}, v{r} row_shr:{sh} row_mask:0xf bank_mask:0xf bound_ctrl:0")
    for r in regs:
        a(f"v_add_f32_dpp v{r}, v{r}, v{r} row_bcast:15 row_mask:0xa bank_mask:0xf")
    for r in regs:
        a(f"v_add_f32_dpp v{r}, v{r}, v{r} row_bcast:31 row_mask:0xc bank_mask:0xf")
    for r, s in zip(regs, sdst):
        a(f"v_readlane_b32 s{s}, v{r}, 63")

def gen_ln(a, st):
    a.label("L_ln")
    a("s_sub_u32 s3, s2, 448")
    a("s_and_b32 s4, s3, 7")
    a("s_lshr_b32 s5, s3, 3")
    a("s_lshl_b32 s4, s4, 4")
    a("s_add_u32 s4, s4, s5")
    a("v_lshrrev_b32 v1, 6, v0")
    a("v_and_b32 v2, 63, v0")
    a("s_nop 0")
    a("v_readfirstlane_b32 s7, v1")
    a("s_lshl_b32 s8, s4, 4")
    a("s_lshl_b32 s9, s7, 2")
    a("s_add_u32 s8, s8, s9")
    a("s_mul_i32 s8, s8, 896")
    a("v_lshl_add_u32 v3, v2, 4, s8")
    a("v_cmp_gt_u32 vcc, 56, v2")
    a("s_mov_b64 s[10:11], vcc")
    a(f"v_mov_b32 v4, {fl(1.0/448)}")
    a(f"v_mov_b32 v5, {fl(1e-5)}")
    X = lambda rr, e: 32 + 8 * rr + e
    P = lambda rr, p: 16 + 4 * rr + p
    T = lambda rr, e: 64 + 8 * rr + e
    S = [8, 9, 10, 11]
    M = [12, 13, 14, 15]
    for i in range(16):
        a(f"v_mov_b32 v{16+i}, 0")
    a(f"v_mov_b32 v13, {fl(-64.0)}")
    a("s_mov_b64 exec, s[10:11]")
    for rr in range(4):
        a(f"global_load_dwordx4 {vr(P(rr,0))}, v3, s[16:17] offset:{896*rr}")
    a("s_mov_b64 exec, -1")
    a("s_mul_i32 s12, s9, 928")
    a("v_lshl_add_u32 v6, v2, 4, s12")
    a("v_and_b32 v7, 15, v2")
    a("s_waitcnt vmcnt(0)")
    st.n = 2; st()
    def unpack(rr):
        for p in range(4):
            a(f"v_lshlrev_b32 v{X(rr,2*p)}, 16, v{P(rr,p)}")
            a(f"v_and_b32 v{X(rr,2*p+1)}, 0xffff0000, v{P(rr,p)}")
    S2 = lambda rr: 96 + 2 * rr
    M2 = lambda rr: 104 + 2 * rr
    R2 = lambda rr: 112 + 2 * rr
    XP = lambda rr, p: f"v[{X(rr,2*p)}:{X(rr,2*p)+1}]"
    TP = lambda rr, p: f"v[{T(rr,2*p)}:{T(rr,2*p)+1}]"
    SP = lambda rr: f"v[{S2(rr)}:{S2(rr)+1}]"
    MP = lambda rr: f"v[{M2(rr)}:{M2(rr)+1}]"
    RP = lambda rr: f"v[{R2(rr)}:{R2(rr)+1}]"
    R4 = range(4)
    def ln_pass():
        for rr in R4: a(f"v_pk_add_f32 {SP(rr)}, {XP(rr,0)}, {XP(rr,1)}")
        for p in (2, 3):
            for rr in R4: a(f"v_pk_add_f32 {SP(rr)}, {SP(rr)}, {XP(rr,p)}")
        for rr in R4: a(f"v_add_f32 v{S2(rr)}, v{S2(rr)}, v{S2(rr)+1}")
        wave_reduce(a, [S2(rr) for rr in R4], [60, 61, 62, 63])
        a("s_nop 0")
        for rr in R4: a(f"v_mul_f32 v{M2(rr)}, s{60+rr}, v4")
        for p in range(4):
            for rr in R4: a(f"v_pk_add_f32 {TP(rr,p)}, {XP(rr,p)}, {MP(rr)} op_sel_hi:[1,0] neg_lo:[0,1] neg_hi:[0,1]")
        for rr in R4: a(f"v_pk_mul_f32 {SP(rr)}, {TP(rr,0)}, {TP(rr,0)}")
        for p in (1, 2, 3):
            for rr in R4: a(f"v_pk_fma_f32 {SP(rr)}, {TP(rr,p)}, {TP(rr,p)}, {SP(rr)}")
        for rr in R4: a(f"v_add_f32 v{S2(rr)}, v{S2(rr)}, v{S2(rr)+1}")
        wave_reduce(a, [S2(rr) for rr in R4], [60, 61, 62, 63])
        for rr in R4: a(f"v_mul_f32 v{R2(rr)}, v{M2(rr)}, v{M2(rr)}")
        for rr in R4: a(f"v_cvt_pk_bf16_f32 v{M2(rr)}, v{M2(rr)}, v{M2(rr)}")
        for rr in R4: a(f"v_fma_f32 v{R2(rr)}, v{R2(rr)}, v13, s{60+rr}")
        for rr in R4: a(f"v_lshlrev_b32 v{M2(rr)}, 16, v{M2(rr)}")
        for rr in R4: a(f"v_mul_f32 v{R2(rr)}, v{R2(rr)}, v4")
        for rr in R4: a(f"v_max_f32 v{R2(rr)}, 0, v{R2(rr)}")
        def rnd():
            for rr in R4: a(f"v_cvt_pk_bf16_f32 v{R2(rr)}, v{R2(rr)}, v{R2(rr)}")
            for rr in R4: a(f"v_lshlrev_b32 v{R2(rr)}, 16, v{R2(rr)}")
        rnd()
        for rr in R4: a(f"v_add_f32 v{R2(rr)}, v{R2(rr)}, v5")
        rnd()
        for rr in R4: a(f"v_sqrt_f32 v{R2(rr)}, v{R2(rr)}")
        rnd()
        for rr in R4: a(f"v_rcp_f32 v{R2(rr)}, v{R2(rr)}")
        for p in range(4):
            for rr in R4: a(f"v_pk_add_f32 {TP(rr,p)}, {XP(rr,p)}, {MP(rr)} op_sel_hi:[1,0] neg_lo:[0,1] neg_hi:[0,1]")
        for p in range(4):
            for rr in R4: a(f"v_cvt_pk_bf16_f32 v{X(rr,p)}, v{T(rr,2*p)}, v{T(rr,2*p+1)}")
        for p in range(4):
            for rr in R4:
                a(f"v_lshlrev_b32 v{T(rr,2*p)}, 16, v{X(rr,p)}")
                a(f"v_and_b32 v{T(rr,2*p+1)}, 0xffff0000, v{X(rr,p)}")
        for p in range(4):
            for rr in R4: a(f"v_pk_mul_f32 {TP(rr,p)}, {TP(rr,p)}, {RP(rr)} op_sel_hi:[1,0]")
        a("s_mov_b64 exec, s[10:11]")
        for p in range(4):
            for rr in R4: a(f"v_cvt_pk_bf16_f32 v{P(rr,p)}, v{T(rr,2*p)}, v{T(rr,2*p+1)}")
        a("s_mov_b64 exec, -1")
    for rr in range(4):
        unpack(rr)
    ln_pass()
    a("s_mov_b64 exec, s[10:11]")
    for rr in range(4):
        a(f"ds_write_b128 v6, {vr(P(rr,0))} offset:{928*rr}")
    a("s_mov_b64 exec, -1")
    st()
    for rr in range(4):
        unpack(rr)
    ln_pass()
    st()
    a("v_lshlrev_b32 v6, 8, v2")
    for rr in range(4):
        a(f"s_add_u32 s12, s9, {rr}")
        a(f"v_xor_b32 v{S[rr]}, s12, v7")
        a(f"v_lshl_add_u32 v{S[rr]}, v{S[rr]}, 4, v6")
    a("s_mov_b64 exec, s[10:11]")
    for rr in range(4):
        a(f"ds_write_b128 v{S[rr]}, {vr(P(rr,0))} offset:14848")
    a("s_mov_b64 exec, -1")
    a("v_lshrrev_b32 v8, 2, v2")
    a("v_mul_u32_u24 v8, 928, v8")
    a("v_and_b32 v9, 3, v2")
    a("v_lshl_add_u32 v8, v9, 3, v8")
    a("s_lshl_b32 s12, s7, 5")
    a("v_add_u32 v8, s12, v8")
    a("v_lshrrev_b32 v9, 4, v2")
    a("v_lshlrev_b32 v9, 3, v9")
    a("v_lshl_add_u32 v9, v7, 5, v9")
    a("s_mul_i32 s13, s4, 14336")
    a("s_lshl_b32 s12, s7, 9")
    a("s_add_u32 s12, s12, s13")
    a(f"s_add_u32 s12, s12, 0x{XNT:x}")
    a("v_lshlrev_b32 v10, 4, v0")
    a("v_bfe_u32 v11, v0, 4, 4")
    a("v_and_b32 v12, 15, v0")
    a("v_xor_b32 v12, v12, v11")
    a("v_lshrrev_b32 v11, 4, v0")
    a("v_lshlrev_b32 v11, 8, v11")
    a("v_lshl_add_u32 v11, v12, 4, v11")
    a("s_waitcnt lgkmcnt(0)")
    a("s_barrier")
    st()
    for k in range(7):
        a(f"ds_read_b64_tr_b16 v[{32+2*k}:{33+2*k}], v8 offset:{128*k}")
    for p in range(3):
        a(f"ds_read_b128 {vr(48+4*p)}, v10 offset:{14848+4096*p}")
    for k in range(7):
        a(f"s_waitcnt lgkmcnt({9-k})")
        a(f"buffer_store_dwordx2 v[{32+2*k}:{33+2*k}], v9, s[80:83], s12 offen")
        a("s_add_u32 s12, s12, 2048")
    for p in range(3):
        a(f"s_waitcnt lgkmcnt({2-p})")
        a(f"buffer_store_dwordx4 {vr(48+4*p)}, v11, s[80:83], s13 offen")
        a("s_add_u32 s13, s13, 4096")
    st()
    if st.on:
        a("s_waitcnt vmcnt(0)")
        st()
        st.dump("s2", int(os.environ.get("SWG", "0")), "s7", 0, "L_ln_nd")
        a.label("L_ln_nd")
    a("s_cmp_ge_u32 s7, 2")
    a("s_cbranch_scc1 L_end1")
    a(f"ds_read_b128 {vr(60)}, v10 offset:{14848+4096*3}")
    a("s_waitcnt lgkmcnt(0)")
    a(f"buffer_store_dwordx4 {vr(60)}, v11, s[80:83], s13 offen")
    a("s_branch L_end1")

def gen_relayout(a, st):
    a.label("L_rel")
    a("s_sub_u32 s3, s2, 576")
    a("v_lshrrev_b32 v1, 6, v0")
    a("v_and_b32 v2, 63, v0")
    a("s_nop 0")
    a("v_readfirstlane_b32 s7, v1")
    a("s_lshl_b32 s3, s3, 2")
    a("s_add_u32 s3, s3, s7")
    srd(a, 84, 36, 448*1792*2)
    srd(a, 88, 40, 448*1792*2)
    a("s_mov_b32 s4, 613566757")
    a("s_mul_hi_u32 s5, s3, s4")
    a("s_mul_i32 s6, s5, 7")
    a("s_sub_u32 s6, s3, s6")
    a(f"s_mul_i32 s8, s5, {8*3584}")
    a("s_lshl_b32 s9, s6, 9")
    a("s_add_u32 s8, s8, s9")
    a("v_lshlrev_b32 v3, 3, v2")
    for j in range(8):
        a(f"buffer_load_dwordx2 v[{16+2*j}:{17+2*j}], v3, s[84:87], s8 offen")
        a("s_add_u32 s8, s8, 3584")
    a("s_lshl_b32 s8, s3, 6")
    a("v_add_u32 v4, s8, v2")
    a("s_mov_b32 s9, 38347923")
    a("v_mul_hi_u32 v5, v4, s9")
    a("v_mul_u32_u24 v6, 112, v5")
    a("v_sub_u32 v6, v4, v6")
    a("v_lshrrev_b32 v7, 2, v5")
    a("v_and_b32 v8, 3, v5")
    a("v_lshlrev_b32 v9, 5, v7")
    a("v_lshl_add_u32 v9, v8, 2, v9")
    a("v_mul_u32_u24 v9, 896, v9")
    a("v_lshl_add_u32 v9, v6, 3, v9")
    a("s_mov_b32 s10, 14336")
    for j in range(8):
        so = "0" if j < 4 else "s10"
        a(f"buffer_load_dwordx2 v[{32+2*j}:{33+2*j}], v9, s[88:91], {so} offen offset:{896*(j&3)}")
    a("v_lshrrev_b32 v10, 2, v2")
    a("v_mul_u32_u24 v10, 14336, v10")
    a("v_and_b32 v11, 3, v2")
    a("v_lshl_add_u32 v10, v11, 6, v10")
    a(f"s_mul_i32 s11, s6, {16*14336}")
    a("s_lshl_b32 s12, s5, 8")
    a("s_add_u32 s11, s11, s12")
    a(f"s_add_u32 s11, s11, 0x{W1F:x}")
    a("v_lshrrev_b32 v12, 2, v6")
    a("v_mul_u32_u24 v12, 57344, v12")
    a("v_lshl_add_u32 v12, v5, 8, v12")
    a("v_and_b32 v13, 3, v6")
    a("v_lshl_add_u32 v12, v13, 6, v12")
    a(f"s_mov_b32 s12, 0x{W2F:x}")
    a("s_mov_b32 s13, 0x05040100")
    a("s_mov_b32 s14, 0x07060302")
    def tr(src, dst, vaddr, soff):
        for e in range(4):
            sel = "s13" if e % 2 == 0 else "s14"
            for p in range(4):
                a(f"v_perm_b32 v{dst+4*e+p}, v{src+2*(2*p+1)+(e>>1)}, v{src+2*(2*p)+(e>>1)}, {sel}")
            a(f"buffer_store_dwordx4 {vr(dst+4*e)}, v{vaddr}, s[80:83], {soff} offen offset:{16*e}")
    st.n = 2; st()
    a("s_waitcnt vmcnt(8)")
    st()
    tr(16, 48, 10, "s11")
    a("s_waitcnt vmcnt(4)")
    st()
    tr(32, 64, 12, "s12")
    st()
    if st.on:
        a("s_waitcnt vmcnt(0)")
        st()
        st.dump("s2", int(os.environ.get("SWG", "0")), "s7", 0, "L_end1")

def gen_k1():
    a = Asm()
    a.raw(khead("prep_kernel"))
    a("s_cmp_ge_u32 s2, 674")
    a("s_cbranch_scc1 L_exit1")
    rt_start(a)
    st = Stamper(a, STAMP == "1")
    st()
    a("s_load_dwordx16 s[16:31], s[0:1], 0")
    a("s_load_dwordx16 s[32:47], s[0:1], 64")
    a("s_load_dwordx2 s[48:49], s[0:1], 128")
    a("s_waitcnt lgkmcnt(0)")
    st()
    srd(a, 80, 48, WS_END)
    a("s_cmp_ge_u32 s2, 576")
    a("s_cbranch_scc1 L_rel")
    a("s_cmp_ge_u32 s2, 448")
    a("s_cbranch_scc1 L_ln")
    gen_kgen(a, st)
    gen_ln(a, st)
    gen_relayout(a, st)
    a.label("L_end1")
    a("s_mov_b64 exec, -1")
    rt_end(a, 1)
    a.label("L_exit1")
    a("s_endpgm")
    return a.text()
```

```python
from gen_common import *
LOG2E = 1.4426950408889634
CH = 37888
UO = 33280
EARLY = 75776
C1 = -2.0 * 0.7978845608028654 * LOG2E
C2 = C1 * 0.044715

def gen_k2():
    a = Asm()
    a.raw(khead("mid_kernel"))
    a("s_cmp_ge_u32 s2, 224")
    a("s_cbranch_scc1 L_exit2")
    rt_start(a)
    st = Stamper(a, STAMP == "2")
    st()
    a("s_load_dwordx2 s[16:17], s[0:1], 64")
    a("s_load_dwordx2 s[18:19], s[0:1], 88")
    a("s_load_dwordx2 s[20:21], s[0:1], 128")
    a("v_lshrrev_b32 v1, 6, v0")
    a("v_and_b32 v2, 63, v0")
    a("v_and_b32 v3, 15, v0")
    a("v_bfe_u32 v4, v0, 4, 2")
    a("v_readfirstlane_b32 s3, v1")
    a("s_and_b32 s4, s2, 7")
    a("s_lshr_b32 s5, s2, 3")
    a("s_cmp_ge_u32 s5, 14")
    a("s_cselect_b32 s6, 1, 0")
    a("s_mul_i32 s7, s6, 14")
    a("s_sub_u32 s7, s5, s7")
    a("s_lshl_b32 s4, s4, 1")
    a("s_add_u32 s6, s6, s4")
    a("s_and_b32 s8, s3, 3")
    a("s_lshr_b32 s9, s3, 2")
    a("v_lshlrev_b32 v5, 4, v2")
    a("s_waitcnt lgkmcnt(0)")
    srd(a, 24, 20, WS_END)
    srd(a, 28, 18, 3584)
    a("s_lshl_b32 s10, s2, 2")
    a("s_load_dword s11, s[16:17], s10")
    a("v_and_b32 v6, 255, v0")
    a("v_lshlrev_b32 v6, 4, v6")
    a("s_lshl_b32 s12, s2, 1")
    a("s_add_u32 s12, s12, s9")
    a(f"s_mul_i32 s13, s12, {KRP}")
    a(f"s_add_u32 s13, s13, 0x{KR:x}")
    a("buffer_load_dwordx4 v[8:11], v6, s[24:27], s13 offen")
    a("buffer_load_dwordx4 v[12:15], v6, s[24:27], s13 offen offset:16")
    a("v_lshrrev_b32 v7, 2, v0")
    a("v_mul_u32_u24 v16, 14336, v7")
    a("v_and_b32 v17, 3, v0")
    a("v_lshl_add_u32 v16, v17, 4, v16")
    a("s_lshl_b32 s14, s2, 6")
    a(f"s_add_u32 s14, s14, 0x{XNT:x}")
    a("buffer_load_dwordx4 v[20:23], v16, s[24:27], s14 offen")
    YB = 200
    a("s_lshl_b32 s15, s6, 3")
    a("s_lshl_b32 s22, s8, 1")
    a("s_add_u32 s15, s15, s22")
    a("s_mul_i32 s22, s15, 14336")
    a("s_mul_i32 s23, s9, 7168")
    a("s_add_u32 s22, s22, s23")
    gl = []
    for mi in range(2):
        for k in range(7):
            off = mi*14336 + (4096 if k >= 4 else 0)
            gl.append([f"s_add_u32 s23, s22, {off}",
                       f"buffer_load_dwordx4 {vr(YB+4*(7*mi+k))}, v5, s[24:27], s23 offen offset:{1024*(k&3)}"])
    a("s_lshl_b32 s32, s7, 3")
    a("s_add_u32 s32, s32, s3")
    a("s_mul_i32 s32, s32, 14336")
    a(f"s_add_u32 s32, s32, 0x{W1F:x}")
    a("s_mul_i32 s33, s3, 5120")
    a(f"s_add_u32 s33, s33, {EARLY}")
    dm = []
    for khp in range(2):
        for k in range(5):
            dm.append([f"s_add_u32 s34, s33, {khp*40960 + 1024*k}",
                       "s_mov_b32 m0, s34",
                       f"s_add_u32 s35, s32, {khp*7168 + 1024*k}",
                       "buffer_load_dwordx4 v5, s[24:27], s35 offen lds"])
    q = []
    while gl or dm:
        if dm: q.append(dm.pop(0))
        if gl: q.append(gl.pop(0))
    NPRE = int(os.environ.get("NPRE", "6"))
    def emit_load():
        if q:
            for l in q.pop(0): a(l)
    for _ in range(NPRE): emit_load()
    a(f"s_mul_i32 s36, s9, {CH}")
    a("v_add_u32 v6, s36, v6")
    a("v_lshrrev_b32 v18, 1, v17")
    a(f"v_mul_u32_u24 v18, {CH}, v18")
    a("v_lshl_add_u32 v18, v7, 5, v18")
    a("v_and_b32 v17, 1, v17")
    a("v_lshl_add_u32 v18, v17, 4, v18")
    for i in range(4):
        a(f"v_mov_b32 v{24+i}, 0")
    a("v_and_b32 v19, 255, v0")
    a("v_cmp_gt_u32 vcc, 32, v19")
    a("v_cmp_gt_u32 s[40:41], 8, v19")
    a(f"v_mul_u32_u24 v28, 4160, v19")
    a("v_add_u32 v28, s36, v28")
    a("s_mov_b64 exec, vcc")
    a(f"ds_write_b128 v6, v[24:27] offset:{UO}")
    a("s_mov_b64 exec, s[40:41]")
    a("ds_write_b128 v28, v[24:27] offset:4096")
    a("s_mov_b64 exec, -1")
    a("v_and_b32 v29, 7, v3")
    a("v_sub_u32 v29, 7, v29")
    a("v_mul_u32_u24 v29, 4160, v29")
    a("v_lshrrev_b32 v30, 1, v4")
    a("v_and_b32 v31, 1, v4")
    a("v_lshrrev_b32 v32, 3, v3")
    a("v_lshlrev_b32 v33, 1, v30")
    a("v_add_u32 v33, v33, v32")
    a("v_sub_u32 v33, v31, v33")
    a("v_lshl_add_u32 v29, v33, 4, v29")
    a("s_lshl_b32 s37, s8, 7")
    a("s_sub_u32 s37, s36, s37")
    a(f"s_add_u32 s38, s37, {16*255 - 64 - 3584}")
    a("v_add_u32 v29, s38, v29")
    a("v_sub_u32 v33, v3, v30")
    a("v_lshlrev_b32 v33, 5, v33")
    a("v_lshl_add_u32 v33, v31, 4, v33")
    a(f"s_add_u32 s38, s37, {UO + 512 - 64}")
    a("v_add_u32 v30, s38, v33")
    st()
    a(f"s_waitcnt vmcnt({NPRE})")
    st()
    D = lambda i: 8 + i
    SA = 32; SB = 38; DB = 44
    for i in range(6):
        a(f"v_alignbit_b32 v{SA+i}, v{D(i+1)}, v{D(i)}, 16")
    for i in range(6):
        a(f"v_alignbit_b32 v{SB+i}, v{D(i+2)}, v{D(i+1)}, 16")
    for i in range(6):
        a(f"v_mov_b32 v{DB+i}, v{D(i+1)}")
    src = {0: D(0), 4: D(2), 1: SA, 5: SA+2, 3: SB, 7: SB+2, 2: DB, 6: DB+2}
    for c in (0, 4, 1, 5, 3, 7, 2, 6):
        a(f"ds_write_b128 v6, {vr(src[c])} offset:{c*4160}")
    a(f"ds_write_b128 v18, v[20:23] offset:{UO+512}")
    a("s_waitcnt lgkmcnt(0)")
    a("s_barrier")
    st()
    ACC = 32
    FA = lambda s, i: 64 + 64*s + 4*i
    FB = lambda s, i: 96 + 64*s + 4*i
    def rd(s, half):
        for i in range(4*half, 4*half+4):
            a(f"ds_read_b128 {vr(FA(s,i))}, v29 offset:{(7-i)*512 + (1-s)*64}")
            a(f"ds_read_b128 {vr(FB(s,i))}, v30 offset:{512*i + (1-s)*64}")
    first = set()
    cnt = [0]
    LSTEP = int(os.environ.get('LSTEP', '4'))
    def mm(s, ia, ib):
        t = ia + ib
        c = vr(ACC+4*t) if t in first else "0"
        first.add(t)
        a(f"v_mfma_f32_16x16x32_bf16 {vr(ACC+4*t)}, {vr(FA(s,ia))}, {vr(FB(s,ib))}, {c}")
        cnt[0] += 1
        if cnt[0] % LSTEP == 0: emit_load()
    def lo(s):
        for ia in range(4):
            for ib in range(4):
                mm(s, ia, ib)
    def hi(s):
        for ia in range(4, 8):
            for ib in range(0, 8-ia):
                mm(s, ia, ib); mm(s, ib, ia)
    rd(0, 0); rd(0, 1)
    a("s_waitcnt lgkmcnt(8)"); lo(0); rd(1, 0)
    a("s_waitcnt lgkmcnt(8)"); hi(0); rd(1, 1)
    a("s_waitcnt lgkmcnt(8)"); lo(1)
    a("s_waitcnt lgkmcnt(0)"); hi(1)
    while q: emit_load()
    a("s_barrier")
    st()
    a("s_lshl_b32 s37, s8, 13")
    a("s_add_u32 s37, s37, s36")
    a("v_add_u32 v6, s37, v5")
    a("s_lshl_b32 s38, s8, 11")
    a("s_add_u32 s38, s38, s36")
    a("v_add_u32 v7, s38, v5")
    a("v_lshlrev_b32 v8, 5, v3")
    a("v_lshl_add_u32 v8, v4, 3, v8")
    a("s_lshl_b32 s39, s8, 10")
    a("s_add_u32 s38, s39, s36")
    a("v_add_u32 v9, s38, v8")
    a("s_nop 2")
    for t in range(8):
        a(f"ds_write_b128 v6, {vr(ACC+4*t)} offset:{1024*t}")
    a(f"ds_read_b64 v[10:11], v9 offset:{UO+512}")
    a(f"ds_read_b64 v[12:13], v9 offset:{UO+512+512}")
    a("s_lshl_b32 s40, s11, 16")
    a("s_and_b32 s41, s11, 0xffff0000")
    a("s_cmp_eq_u32 s9, 0")
    a("s_cselect_b32 s40, s40, s41")
    a("s_lshl_b32 s41, s12, 12")
    a("s_add_u32 s41, s41, s39")
    a(f"s_add_u32 s41, s41, 0x{YAT:x}")
    a("s_waitcnt lgkmcnt(0)")
    a("s_barrier")
    st()
    for p in range(4):
        for tt in range(2):
            a(f"ds_read_b128 {vr(64+8*p+4*tt)}, v7 offset:{8192*p + 1024*tt}")
    for tt in range(2):
        for h in range(2):
            a(f"v_lshlrev_b32 v{16+4*tt+2*h}, 16, v{10+2*tt+h}")
            a(f"v_and_b32 v{17+4*tt+2*h}, 0xffff0000, v{10+2*tt+h}")
    for i in range(8):
        a(f"v_mul_f32 v{16+i}, s40, v{16+i}")
    for i in range(4):
        a(f"v_cvt_pk_bf16_f32 v{24+i}, v{16+2*i}, v{17+2*i}")
    for i in range(4):
        a(f"v_lshlrev_b32 v{16+2*i}, 16, v{24+i}")
        a(f"v_and_b32 v{17+2*i}, 0xffff0000, v{24+i}")
    a("s_waitcnt lgkmcnt(0)")
    for p in (1, 3):
        for i in range(8):
            a(f"v_add_f32 v{64+8*(p-1)+i}, v{64+8*(p-1)+i}, v{64+8*p+i}")
    for i in range(8):
        a(f"v_add_f32 v{64+i}, v{64+i}, v{80+i}")
    for i in range(4):
        a(f"v_cvt_pk_bf16_f32 v{24+i}, v{64+2*i}, v{65+2*i}")
    for i in range(4):
        a(f"v_lshlrev_b32 v{64+2*i}, 16, v{24+i}")
        a(f"v_and_b32 v{65+2*i}, 0xffff0000, v{24+i}")
    for i in range(8):
        a(f"v_add_f32 v{64+i}, v{64+i}, v{16+i}")
    for i in range(4):
        a(f"v_cvt_pk_bf16_f32 v{24+i}, v{64+2*i}, v{65+2*i}")
    a("buffer_store_dwordx2 v[24:25], v8, s[24:27], s41 offen")
    a("buffer_store_dwordx2 v[26:27], v8, s[24:27], s41 offen offset:512")
    a("s_waitcnt vmcnt(2)")
    a("s_barrier")
    st()
    a("s_lshl_b32 s34, s3, 11")
    for khp in range(2):
        a(f"s_add_u32 s33, s34, {khp*16384}")
        a("s_mov_b32 m0, s33")
        a(f"s_add_u32 s35, s32, {khp*7168 + 5120}")
        a("buffer_load_dwordx4 v5, s[24:27], s35 offen lds")
        a("buffer_load_dwordx4 v5, s[24:27], s35 offen offset:1024 lds")
    BB = 8
    a("v_lshlrev_b32 v6, 3, v4")
    a("s_lshl_b32 s35, s7, 8")
    for ft in range(8):
        a(f"buffer_load_dwordx2 v[{BB+2*ft}:{BB+2*ft+1}], v6, s[28:31], s35 offen offset:{32*ft}")
    GA = 32
    WB = lambda b, ft: 96 + 32*b + 4*ft
    a("s_mul_i32 s33, s9, 40960")
    a(f"s_add_u32 s33, s33, {EARLY}")
    a("v_add_u32 v6, s33, v5")
    a("s_lshl_b32 s33, s9, 14")
    a("v_add_u32 v7, s33, v5")
    def wrd(k):
        for ft in range(8):
            if k < 5:
                a(f"ds_read_b128 {vr(WB(k&1,ft))}, v6 offset:{(ft*5+k)*1024}")
            else:
                a(f"ds_read_b128 {vr(WB(k&1,ft))}, v7 offset:{(ft*2+k-5)*1024}")
    def gmm(k):
        for ft in range(8):
            for mi in range(2):
                c = "0" if k == 0 else vr(GA+8*ft+4*mi)
                a(f"v_mfma_f32_16x16x32_bf16 {vr(GA+8*ft+4*mi)}, {vr(WB(k&1,ft))}, {vr(YB+4*(7*mi+k))}, {c}")
    wrd(0)
    for k in range(7):
        if k == 4:
            a("s_waitcnt vmcnt(8)")
            a("s_barrier")
            st()
        if k < 6:
            wrd(k+1)
            a("s_waitcnt lgkmcnt(8)")
        else:
            a("s_waitcnt lgkmcnt(0)")
        gmm(k)
    a("s_barrier")
    st()
    a("s_lshl_b32 s33, s8, 1")
    a("s_add_u32 s34, s33, s9")
    a("s_lshl_b32 s34, s34, 13")
    a(f"s_add_u32 s34, s34, {EARLY}")
    a("v_add_u32 v6, s34, v5")
    a("s_xor_b32 s34, s34, 0")
    a("s_sub_u32 s35, 1, s9")
    a("s_add_u32 s35, s35, s33")
    a("s_lshl_b32 s35, s35, 13")
    a(f"s_add_u32 s35, s35, {EARLY}")
    a("v_add_u32 v7, s35, v5")
    a("s_cmp_eq_u32 s9, 0")
    a("s_cbranch_scc0 L_k2_kh1")
    def xchg(kh, lab_end):
        for ft in range(8):
            a(f"ds_write_b128 v6, {vr(GA+8*ft+4*(1-kh))} offset:{1024*ft}")
        if kh == 1:
            for ft in range(8):
                for i in range(4):
                    a(f"v_mov_b32 v{GA+8*ft+i}, v{GA+8*ft+4+i}")
    xchg(0, None)
    a("s_branch L_k2_join")
    a.label("L_k2_kh1")
    xchg(1, None)
    a.label("L_k2_join")
    a(f"s_mov_b32 s36, {fl(C1)}")
    a(f"v_mov_b32 v24, {fl(C2)}")
    a("s_add_u32 s15, s15, s9")
    a("s_mul_i32 s15, s15, 57344")
    a("s_lshl_b32 s33, s7, 12")
    a("s_add_u32 s15, s15, s33")
    a(f"s_add_u32 s15, s15, 0x{HF:x}")
    a("s_waitcnt vmcnt(0) lgkmcnt(0)")
    a("s_barrier")
    st()
    for ft in range(8):
        a(f"ds_read_b128 {vr(96+4*ft)}, v7 offset:{1024*ft}")
    for ft in range(8):
        for h in range(2):
            a(f"v_lshlrev_b32 v{128+4*ft+2*h}, 16, v{BB+2*ft+h}")
            a(f"v_and_b32 v{129+4*ft+2*h}, 0xffff0000, v{BB+2*ft+h}")
    pp = lambda r: f"v[{r}:{r+1}]"
    for ft in range(8):
        for i in (0, 2):
            a(f"v_pk_add_f32 {pp(GA+8*ft+i)}, {pp(GA+8*ft+i)}, {pp(128+4*ft+i)}")
    for p in range(4):
        a(f"s_waitcnt lgkmcnt({6-2*p})")
        X = [GA+8*(2*p+h)+i for h in range(2) for i in (0, 2)]
        Q = [96+4*(2*p+h)+i for h in range(2) for i in (0, 2)]
        T = [160+2*j for j in range(4)]
        for j in range(4): a(f"v_pk_add_f32 {pp(X[j])}, {pp(X[j])}, {pp(Q[j])}")
        for j in range(4): a(f"v_pk_mul_f32 {pp(T[j])}, {pp(X[j])}, {pp(X[j])}")
        for j in range(4): a(f"v_pk_fma_f32 {pp(T[j])}, {pp(T[j])}, v[24:25], s[36:37] op_sel_hi:[1,0,0]")
        for j in range(4): a(f"v_pk_mul_f32 {pp(T[j])}, {pp(T[j])}, {pp(X[j])}")
        for j in range(8): a(f"v_exp_f32 v{160+j}, v{160+j}")
        for j in range(4): a(f"v_pk_add_f32 {pp(T[j])}, {pp(T[j])}, 1.0 op_sel_hi:[1,0]")
        for j in range(8): a(f"v_rcp_f32 v{160+j}, v{160+j}")
        for j in range(4): a(f"v_pk_mul_f32 {pp(T[j])}, {pp(T[j])}, {pp(X[j])}")
        for j in range(4): a(f"v_cvt_pk_bf16_f32 v{168+4*p+j}, v{160+2*j}, v{161+2*j}")
        a(f"buffer_store_dwordx4 {vr(168+4*p)}, v5, s[24:27], s15 offen offset:{1024*p}")
    st()
    a("s_waitcnt vmcnt(0)")
    st()
    st.dump("s2", int(os.environ.get("SWG", "0")), "s3", int(os.environ.get("SWAVE", "0")), "L_end2")
    a.label("L_end2")
    a("s_mov_b64 exec, -1")
    rt_end(a, 2)
    a.label("L_exit2")
    a("s_endpgm")
    return a.text()
```

```python
from gen_common import *
DEPTH = 5
YS = 0
RB = 10240
def gen_k3():
    a = Asm()
    a.raw(khead(NAME + "_kernel"))
    a("s_cmp_ge_u32 s2, 224")
    a("s_cbranch_scc1 L_exit3")
    rt_start(a)
    st = Stamper(a, STAMP == "3")
    st()
    a("s_load_dwordx2 s[16:17], s[0:1], 0")
    a("s_load_dwordx4 s[20:23], s[0:1], 104")
    a("s_load_dwordx2 s[18:19], s[0:1], 128")
    a("v_lshrrev_b32 v1, 6, v0")
    a("v_and_b32 v2, 63, v0")
    a("v_and_b32 v3, 15, v0")
    a("v_bfe_u32 v4, v0, 4, 2")
    a("v_readfirstlane_b32 s3, v1")
    a(f"s_add_u32 s4, s2, {int(os.environ.get('XSH', '0'))}")
    a("s_and_b32 s4, s4, 7")
    a("s_lshr_b32 s5, s2, 3")
    a("s_mov_b32 s6, 613566757")
    a("s_mul_hi_u32 s6, s5, s6")
    a("s_mul_i32 s7, s6, 7")
    a("s_sub_u32 s7, s5, s7")
    a("s_lshl_b32 s4, s4, 2")
    a("s_add_u32 s6, s6, s4")
    a("v_lshlrev_b32 v5, 4, v2")
    a("s_waitcnt lgkmcnt(0)")
    st()
    srd(a, 24, 18, WS_END)
    srd(a, 28, 16, 2048*448*2)
    srd(a, 32, 22, 2048*448*2)
    srd(a, 36, 20, 896)
    a("s_mul_i32 s8, s3, 14336")
    a(f"s_mul_i32 s9, s7, {4*57344}")
    a("s_add_u32 s9, s9, s8")
    a(f"s_add_u32 s40, s9, 0x{W2F:x}")
    a(f"s_mul_i32 s9, s6, {4*57344}")
    a("s_add_u32 s9, s9, s8")
    a(f"s_add_u32 s44, s9, 0x{HF:x}")
    for i in range(1, 4):
        a(f"s_add_u32 s{40+i}, s{39+i}, 57344")
        a(f"s_add_u32 s{44+i}, s{43+i}, 57344")
    ACC = 16
    FR = lambda slot, i: 80 + 32*slot + 4*i
    ROT = os.environ.get("ROT", "1") == "1"
    a("s_and_b32 s48, s6, 3")
    a("s_lshl_b32 s48, s48, 1")
    a("s_add_u32 s48, s48, s7")
    a("s_lshl_b32 s48, s48, 1")
    a("s_cmp_ge_u32 s48, 14")
    a("s_cselect_b32 s49, 14, 0")
    a("s_sub_u32 s48, s48, s49")
    a("s_lshl_b32 s48, s48, 10")
    if not ROT:
        a("s_mov_b32 s48, 0")
    def ld(k):
        slot = k % DEPTH
        a("v_add_u32 v14, s48, v5")
        a("s_add_u32 s48, s48, 1024")
        a("s_cmp_eq_u32 s48, 14336")
        a("s_cselect_b32 s48, 0, s48")
        for i in (0, 4, 1, 5, 2, 6, 3, 7):
            a(f"buffer_load_dwordx4 {vr(FR(slot,i))}, v14, s[24:27], s{40+i} offen")
    ld(0); st(); ld(1); st()
    a("v_lshrrev_b32 v6, 2, v0")
    a("v_and_b32 v7, 3, v0")
    a("v_lshlrev_b32 v8, 12, v6")
    a("v_lshl_add_u32 v8, v7, 5, v8")
    a("s_lshl_b32 s9, s7, 18")
    a("s_lshl_b32 s10, s6, 7")
    a("s_add_u32 s9, s9, s10")
    a(f"s_add_u32 s9, s9, 0x{YAT:x}")
    a("buffer_load_dwordx4 v[240:243], v8, s[24:27], s9 offen")
    a("buffer_load_dwordx4 v[244:247], v8, s[24:27], s9 offen offset:16")
    a("v_mul_u32_u24 v9, 160, v6")
    a("v_lshl_add_u32 v9, v7, 5, v9")
    a("v_mul_u32_u24 v10, 896, v3")
    a("v_lshl_add_u32 v10, v4, 3, v10")
    a(f"s_mul_i32 s10, s6, {64*896}")
    a("s_lshl_b32 s11, s7, 7")
    a("s_add_u32 s10, s10, s11")
    a("s_lshl_b32 s12, s3, 5")
    a("s_add_u32 s10, s10, s12")
    a("s_add_u32 s12, s12, s11")
    a("s_mov_b32 s13, s10")
    for j in range(4):
        a(f"buffer_load_dwordx2 v[{248+2*j}:{249+2*j}], v10, s[28:31], s13 offen")
        a("s_add_u32 s13, s13, 14336")
    a("v_lshlrev_b32 v11, 3, v4")
    a("buffer_load_dwordx2 v[12:13], v11, s[36:39], s12 offen")
    for k in range(2, DEPTH):
        ld(k); st()
    for k in range(14):
        later = min(k + DEPTH - 1, 13) - k
        n = 8 * later + (7 if k < 2 else 0)
        a(f"s_waitcnt vmcnt({n})")
        if k in (0, 4, 13): st()
        slot = k % DEPTH
        for i in range(4):
            for j in range(4):
                c = "0" if k == 0 else vr(ACC+16*i+4*j)
                a(f"v_mfma_f32_16x16x32_bf16 {vr(ACC+16*i+4*j)}, {vr(FR(slot,i))}, {vr(FR(slot,4+j))}, {c}")
        if k == 2:
            a(f"ds_write_b128 v9, v[240:243] offset:{YS}")
            a(f"ds_write_b128 v9, v[244:247] offset:{YS+16}")
        if k + DEPTH < 14:
            ld(k + DEPTH)
    a("s_lshl_b32 s9, s3, 14")
    a(f"s_add_u32 s9, s9, {RB}")
    a("v_add_u32 v6, s9, v5")
    a("s_lshl_b32 s9, s3, 12")
    a(f"s_add_u32 s9, s9, {RB}")
    a("v_add_u32 v7, s9, v5")
    a("v_lshrrev_b32 v8, 2, v2")
    a("s_lshl_b32 s9, s3, 4")
    a("v_add_u32 v8, s9, v8")
    a("v_mul_u32_u24 v8, 160, v8")
    a("v_and_b32 v9, 3, v2")
    a("v_lshl_add_u32 v8, v9, 3, v8")
    for t in range(16):
        a(f"ds_write_b128 v6, {vr(ACC+4*t)} offset:{1024*t}")
    a("s_waitcnt lgkmcnt(0)")
    st()
    a("s_barrier")
    st()
    for j in range(4):
        a(f"ds_read_b64_tr_b16 v[{144+2*j}:{145+2*j}], v8 offset:{YS+32*j}")
    def rdp(j):
        for p in range(4):
            a(f"ds_read_b128 {vr(80+16*j+4*p)}, v7 offset:{16384*p + 1024*j}")
    rdp(0); rdp(1)
    a("v_lshlrev_b32 v152, 16, v12\nv_and_b32 v153, 0xffff0000, v12\nv_lshlrev_b32 v154, 16, v13\nv_and_b32 v155, 0xffff0000, v13")
    a("s_waitcnt lgkmcnt(8)")
    for j in range(4):
        for h in range(2):
            a(f"v_lshlrev_b32 v{160+4*j+2*h}, 16, v{248+2*j+h}")
            a(f"v_and_b32 v{161+4*j+2*h}, 0xffff0000, v{248+2*j+h}")
            a(f"v_lshlrev_b32 v{176+4*j+2*h}, 16, v{144+2*j+h}")
            a(f"v_and_b32 v{177+4*j+2*h}, 0xffff0000, v{144+2*j+h}")
    for i in range(16):
        a(f"v_add_f32 v{160+i}, v{160+i}, v{176+i}")
    for i in range(8):
        a(f"v_cvt_pk_bf16_f32 v{176+i}, v{160+2*i}, v{161+2*i}")
    for i in range(8):
        a(f"v_lshlrev_b32 v{160+2*i}, 16, v{176+i}")
        a(f"v_and_b32 v{161+2*i}, 0xffff0000, v{176+i}")
    for j in range(4):
        a(f"s_waitcnt lgkmcnt({4 if j < 3 else 0})")
        if j < 2:
            rdp(j + 2)
        b = 80 + 16*j
        for i in range(4):
            a(f"v_add_f32 v{b+i}, v{b+i}, v{b+4+i}")
            a(f"v_add_f32 v{b+8+i}, v{b+8+i}, v{b+12+i}")
        for i in range(4):
            a(f"v_add_f32 v{b+i}, v{b+i}, v{b+8+i}")
        def rnd():
            a(f"v_cvt_pk_bf16_f32 v{b+4}, v{b}, v{b+1}")
            a(f"v_cvt_pk_bf16_f32 v{b+5}, v{b+2}, v{b+3}")
        def unp():
            a(f"v_lshlrev_b32 v{b}, 16, v{b+4}\nv_and_b32 v{b+1}, 0xffff0000, v{b+4}")
            a(f"v_lshlrev_b32 v{b+2}, 16, v{b+5}\nv_and_b32 v{b+3}, 0xffff0000, v{b+5}")
        rnd(); unp()
        for i in range(4):
            a(f"v_add_f32 v{b+i}, v{b+i}, v{152+i}")
        rnd(); unp()
        for i in range(4):
            a(f"v_add_f32 v{b+i}, v{160+4*j+i}, v{b+i}")
        rnd()
        a(f"buffer_store_dwordx2 v[{b+4}:{b+5}], v10, s[32:35], s10 offen")
        a("s_add_u32 s10, s10, 14336")
    st()
    a("s_waitcnt vmcnt(0)")
    st()
    st.dump("s2", int(os.environ.get("SWG", "0")), "s3", int(os.environ.get("SWAVE", "0")), "L_end3")
    a.label("L_end3")
    a("s_mov_b64 exec, -1")
    rt_end(a, 3)
    a.label("L_exit3")
    a("s_endpgm")
    return a.text()
```

```python
import sys
from gen_common import *
from gen_k1 import gen_k1
from gen_k2 import gen_k2
from gen_k3 import gen_k3
ref = open("cdna_kernels/" + NAME + ".s.ref").read().split("\n")
hdr = [l for l in ref if l.startswith(";") and "@launch" not in l]
out = "\n".join(hdr) + "\n"
out += "; @launch kernel=prep_kernel grid=(674,1,1) block=(256,1,1) lds=53504\n"
out += "; @launch kernel=mid_kernel grid=(224,1,1) block=(512,1,1) lds=163840\n"
out += f"; @launch kernel={NAME}_kernel grid=(224,1,1) block=(256,1,1) lds=75776\n"
out += '.amdgcn_target "amdgcn-amd-amdhsa--gfx950"\n.text\n'
out += gen_k1() + gen_k2() + gen_k3()
out += '.section .rodata,"a"\n'
out += kdesc("prep_kernel", 136) + kdesc("mid_kernel", 256) + kdesc(NAME + "_kernel", 256)
dst = sys.argv[1] if len(sys.argv) > 1 else "cdna_kernels/" + NAME + ".s"
open(dst, "w").write(out)
print("written", dst, len(out))
```

```python
import sys,re
src=open('parallel_sum__ssm_conv_s4__mixer_channel_mlp__prompt.s').read()
from gen_common import kdesc,khead
def add(pos,n,dst):
    lines=src.split('\n')
    idx=[i for i,l in enumerate(lines) if l.startswith('; @launch')]
    new=["; @launch kernel=nop_kernel grid=(1,1,1) block=(64,1,1) lds=0"]*n
    at = idx[0] if pos==0 else idx[pos-1]+1
    lines[at:at]=new
    s='\n'.join(lines)
    s=s.replace('.section .rodata,"a"\n', khead('nop_kernel')+"    s_endpgm\n"+'.section .rodata,"a"\n'+kdesc('nop_kernel',8))
    open(dst,'w').write(s)
add(0,1,'e1.s'); add(3,1,'e2.s'); add(0,3,'e3.s'); add(1,1,'e4.s')
```

```python
import sys
from gen_common import *
src=open(sys.argv[1]).read()
lines=src.split('\n')
idx=[i for i,l in enumerate(lines) if l.startswith('; @launch')]
nl=len(idx)
import re
grids=[int(re.search(r'grid=\((\d+)',lines[i]).group(1)) for i in idx]
lines[idx[-1]+1:idx[-1]+1]=["; @launch kernel=fin_kernel grid=(1,1,1) block=(64,1,1) lds=0"]
a=Asm()
a.raw(khead('fin_kernel'))
a("s_memrealtime s[20:21]")
a("s_cmp_eq_u32 s2, 0\ns_cbranch_scc0 L_fin_end")
a("s_load_dwordx4 s[4:7], s[0:1], 120\ns_waitcnt lgkmcnt(0)")

outs=[]
def rng(k,lo,hi,base):
    a("v_mov_b32 v10, -1\nv_mov_b32 v11, 0\nv_mov_b32 v12, -1\nv_mov_b32 v13, 0")
    for i in range((hi-lo+63)//64):
        a(f"v_add_u32 v1, {lo+64*i}, v0\nv_min_u32 v1, {hi-1}, v1\nv_lshlrev_b32 v1, 3, v1\nv_add_u32 v1, 0x{RTBASE+(k+1)*8192:x}, v1")
        a("global_load_dwordx2 v[2:3], v1, s[6:7]\ns_waitcnt vmcnt(0)")
        a("v_min_u32 v10, v10, v2\nv_max_u32 v11, v11, v2\nv_min_u32 v12, v12, v3\nv_max_u32 v13, v13, v3")
    for j,(op,init) in enumerate([("s_min_u32",-1),("s_max_u32",0),("s_min_u32",-1),("s_max_u32",0)]):
        a(f"s_mov_b32 s{base+j}, {init}")
        for l in range(64):
            a(f"v_readlane_b32 s30, v{10+j}, {l}\ns_nop 3\n{op} s{base+j}, s{base+j}, s30")
for k in range(nl):
    rng(k,0,grids[k],32+4*k)
ex=[(0,448),(448,576),(576,674)] if nl==3 else []
for e,(lo,hi) in enumerate(ex):
    rng(0,lo,hi,60+4*e)
res=[32+i for i in range(4*nl)]+[63+4*e for e in range(len(ex))]+[20]
a("v_mov_b32 v1, 0")
for i,r in enumerate(res[:16]):
    a(f"s_sub_u32 s31, s{r}, s32\nv_mov_b32 v2, s31\nglobal_store_dword v1, v2, s[4:5] offset:{4*i}")
a.label("L_fin_end")
a("s_endpgm")
s='\n'.join(lines)
s=s.replace('.section .rodata,"a"\n', a.text()+'.section .rodata,"a"\n'+kdesc('fin_kernel',16))
open(sys.argv[2],'w').write(s)
```

```python
from gen_common import *
LOG2E = 1.4426950408889634
INV2PI = 0.15915494309189535


def pr(z): return f"v[{z[0]}:{z[1]}]"
def cmul(a, z, x, y):
    a(f"v_pk_mul_f32 {pr(z)}, {pr(x)}, {pr(y)} op_sel:[0,0] op_sel_hi:[0,1]")
    a(f"v_pk_fma_f32 {pr(z)}, {pr(x)}, {pr(y)}, {pr(z)} op_sel:[1,1,0] op_sel_hi:[1,0,1] neg_lo:[1,0,0]")

def gen_kgen(a, st, END="L_end1"):
    a("s_lshl_b32 s3, s50, 9")
    a("v_lshl_add_u32 v1, v0, 1, s3")
    a("s_lshl_b32 s4, s50, 1")
    a("v_mov_b32 v2, s4")
    a("global_load_ushort v3, v2, s[30:31]")
    for i, p in enumerate([1, 2, 3, 4, 5, 6]):
        a(f"global_load_ushort v{4+i}, v1, s[{16+2*p}:{17+2*p}]")
    a("v_lshlrev_b32 v16, 2, v0")
    for k in range(1, 16):
        a(f"v_xor_b32 v{16+k}, {k<<4}, v16")
    a(f"s_mov_b32 s4, {fl(LOG2E)}")
    a(f"s_mov_b32 s5, {fl(INV2PI)}")
    a("v_lshrrev_b32 v1, 6, v0")
    a("s_waitcnt vmcnt(6)")
    a("v_lshlrev_b32 v3, 16, v3")
    a("v_readfirstlane_b32 s7, v1")
    a("v_mul_f32 v3, s4, v3")
    a("v_exp_f32 v3, v3")
    a("s_nop 0")
    a("v_cvt_pk_bf16_f32 v3, v3, v3")
    a("v_lshlrev_b32 v2, 16, v3")
    a("s_waitcnt vmcnt(0)")
    st.n = 2; st()
    for i in range(6):
        a(f"v_lshlrev_b32 v{4+i}, 16, v{4+i}")
    a("v_pk_mul_f32 v[4:5], v[4:5], v[2:3] op_sel_hi:[1,0]")
    a("v_pk_mul_f32 v[6:7], v[6:7], v[2:3] op_sel_hi:[1,0]")
    a("v_pk_mul_f32 v[4:5], v[4:5], s[4:5]")
    nxt = [32]
    def newp():
        p = (nxt[0], nxt[0] + 1); nxt[0] += 2; return p
    def direct(e):
        z = newp(); t = newp()
        if e == 1:
            a(f"v_exp_f32 v{t[0]}, v4")
            a(f"v_fract_f32 v{t[1]}, v5")
        else:
            a(f"v_mul_f32 v{t[0]}, {fl(float(e))}, v4")
            a(f"v_mul_f32 v{t[1]}, {fl(float(e))}, v5")
            a(f"v_exp_f32 v{t[0]}, v{t[0]}")
            a(f"v_fract_f32 v{t[1]}, v{t[1]}")
        a(f"v_cos_f32 v{z[0]}, v{t[1]}")
        a(f"v_sin_f32 v{z[1]}, v{t[1]}")
        a("s_nop 0")
        a(f"v_pk_mul_f32 {pr(z)}, {pr(z)}, {pr(t)} op_sel_hi:[1,0]")
        return z
    tcnt = [0]
    HE = 112
    HFh = 116
    def putE(r, z):
        if r < 4:
            a(f"v_cvt_pk_bf16_f32 v{HE+r}, v{z[0]}, v{z[1]}")
        else:
            t = 10 + (tcnt[0] % 4); tcnt[0] += 1
            a(f"v_cvt_pk_bf16_f32 v{t}, v{z[0]}, v{z[1]}")
            if r < 16:
                a(f"ds_write_b32 v{16+r}, v{t} offset:{r*1024}")
            else:
                a(f"ds_write2st64_b32 v{16+(r&15)}, v{HE+r-16}, v{t} offset0:{(r-16)*4} offset1:{r*4}")
    def putF(i, z):
        if i < 16:
            a(f"v_cvt_pk_bf16_f32 v{HFh+i}, v{z[0]}, -v{z[1]}")
        else:
            t = 10 + (tcnt[0] % 4); tcnt[0] += 1
            a(f"v_cvt_pk_bf16_f32 v{t}, v{z[0]}, -v{z[1]}")
            a(f"ds_write2st64_b32 v{16+(i&15)}, v{HFh+i-16}, v{t} offset0:{(20+i-16)*4} offset1:{(20+i)*4}")
    def mul(x, y):
        z = newp(); cmul(a, z, x, y); return z
    z1 = direct(1); z8 = direct(8); z256 = direct(256)
    W = mul((8, 9), (6, 7))
    a(f"v_mov_b32 v{HE}, 0x3f80")
    putE(1, z1)
    z16 = mul(z8, z8); z2 = mul(z1, z1)
    putF(0, W)
    F = [W, mul(W, z8)]
    putE(2, z2)
    z24 = mul(z16, z8); z32 = mul(z16, z16)
    z3 = mul(z2, z1); z4 = mul(z2, z2)
    putF(1, F[1])
    F.append(mul(W, z16)); F.append(mul(W, z24))
    putE(3, z3); putE(4, z4)
    z5 = mul(z4, z1); z6 = mul(z4, z2); z7 = mul(z4, z3)
    putF(2, F[2]); putF(3, F[3])
    z512 = mul(z256, z256)
    putE(5, z5); putE(6, z6); putE(7, z7); putE(8, z256)
    cur = [newp() for _ in range(4)]; alt = [newp() for _ in range(4)]
    state = {"src": list(F)}
    def fstep(i0):
        dst = cur if state["src"] is not cur else alt
        for c in range(4):
            cmul(a, dst[c], state["src"][c], z32)
        return dst
    def fput(i0, dst):
        for c in range(4):
            putF(i0 + c, dst[c])
        state["src"] = dst
    e9 = mul(z256, z2); e10 = mul(z256, z4); e11 = mul(z256, z6)
    d = fstep(4)
    z768 = mul(z512, z256); z1024 = mul(z512, z512); e13 = mul(z512, z4)
    putE(9, e9); putE(10, e10); putE(11, e11); putE(12, z512)
    fput(4, d); d = fstep(8)
    e15 = mul(z768, z4); z1280 = mul(z1024, z256); z1536 = mul(z1024, z512); z1792 = mul(z1024, z768); z2048 = mul(z1024, z1024)
    putE(13, e13); putE(14, z768); putE(16, z1024)
    fput(8, d); d = fstep(12)
    a(f"v_mul_f32 v14, v{W[0]}, v{z2048[0]}")
    a(f"v_fma_f32 v14, -v{W[1]}, v{z2048[1]}, v14")
    putE(15, e15); putE(17, z1280); putE(18, z1536); putE(19, z1792)
    fput(12, d)
    dpp = [f"row_shr:{sh} row_mask:0xf bank_mask:0xf bound_ctrl:0" for sh in (1, 2, 4, 8)] + ["row_bcast:15 row_mask:0xa bank_mask:0xf", "row_bcast:31 row_mask:0xc bank_mask:0xf"]
    for q, i0 in enumerate((16, 20, 24, 28)):
        d = fstep(i0)
        a(f"v_add_f32_dpp v14, v14, v14 {dpp[q]}")
        fput(i0, d)
    assert nxt[0] <= 112, nxt[0]
    a("v_and_b32 v2, 15, v0")
    a("v_bfe_u32 v3, v0, 4, 2")
    a(f"v_add_f32_dpp v14, v14, v14 {dpp[4]}")
    a("s_lshr_b32 s8, s7, 1")
    a("s_and_b32 s9, s7, 1")
    a("s_lshl_b32 s10, s8, 14")
    a("s_lshl_b32 s11, s9, 14")
    a(f"s_add_u32 s11, s11, {20*1024}")
    a("v_lshlrev_b32 v4, 10, v2")
    a(f"v_add_f32_dpp v14, v14, v14 {dpp[5]}")
    a("v_xor_b32 v5, v3, v2")
    a("s_lshl_b32 s12, s7, 2")
    a("v_mov_b32 v15, s12")
    for tl in range(4):
        a(f"v_xor_b32 v6, {4*tl}, v5")
        a(f"v_lshl_add_u32 v6, v6, 4, v4")
        a(f"v_add_u32 v{16+tl}, s10, v6")
        a(f"v_add_u32 v{20+tl}, s11, v6")
    a("s_mov_b64 s[14:15], exec")
    a("s_mov_b32 exec_lo, 0")
    a("s_mov_b32 exec_hi, 0x80000000")
    a("ds_write_b32 v15, v14 offset:53248")
    a("s_mov_b64 exec, s[14:15]")
    st()
    a("s_waitcnt lgkmcnt(0)")
    a("s_barrier")
    st()
    def issue(b):
        base = 32 + (b & 1) * 32
        for tl in range(4):
            a(f"ds_read_b128 {vr(base+8*tl)}, v{16+tl} offset:{256*b}")
            a(f"ds_read_b128 {vr(base+8*tl+4)}, v{20+tl} offset:{256*b}")
    def mm(b):
        base = 32 + (b & 1) * 32
        for tl in range(4):
            c = "0" if (b == 0 and tl == 0) else vr(24)
            a(f"v_mfma_f32_16x16x32_bf16 {vr(24)}, {vr(base+8*tl)}, {vr(base+8*tl+4)}, {c}")
    a("v_mov_b32 v15, 0")
    a("ds_read_b128 v[112:115], v15 offset:53248")
    issue(0); issue(1)
    D = 2304
    a("v_cmp_eq_u32 s[52:53], 1, v3")
    a("v_cmp_eq_u32 s[54:55], 2, v3")
    a("v_cmp_eq_u32 s[56:57], 3, v3")
    a("s_cmp_eq_u32 s8, 0")
    base0 = [0, 4, 256, 512]; step0 = [1, 1, 2, 4]
    base1 = [1024, D, D, D]; step1 = [256, 0, 0, 0]
    for g in range(4):
        a(f"s_mov_b32 s12, {2*base0[g]}")
        a(f"s_cselect_b32 s{32+g}, s12, {2*base1[g]}")
        a(f"s_mov_b32 s12, {2*step0[g]}")
        a(f"s_cselect_b32 s{36+g}, s12, {2*step1[g]}")
    a("s_cselect_b32 s40, 496, 0")
    a("s_lshl_b32 s13, s9, 8")
    a("v_lshl_add_u32 v8, v2, 4, s13")
    a("v_mov_b32 v100, s32\nv_mov_b32 v104, s36")
    for g, m in ((1, "s[52:53]"), (2, "s[54:55]"), (3, "s[56:57]")):
        a(f"v_mov_b32 v9, s{32+g}")
        a(f"v_mov_b32 v10, s{36+g}")
        a(f"v_cndmask_b32 v100, v100, v9, {m}")
        a(f"v_cndmask_b32 v104, v104, v10, {m}")
    a("v_mov_b32 v9, s40")
    a("v_cndmask_b32 v9, 0, v9, s[56:57]")
    a("v_add_u32 v100, v100, v8")
    a("v_add_u32 v101, v100, v104")
    a("v_add3_u32 v102, v101, v104, v9")
    a("v_add_u32 v103, v102, v104")
    a("s_waitcnt lgkmcnt(8)"); mm(0); issue(2)
    a("v_add_f32 v112, v112, v113\nv_add_f32 v114, v114, v115\nv_add_f32 v112, v112, v114")
    a("v_cvt_pk_bf16_f32 v112, v112, v112")
    a("s_waitcnt lgkmcnt(8)"); mm(1); issue(3)
    a("v_lshlrev_b32 v8, 4, v0")
    a("v_sub_u32 v104, 4094, v8")
    a("v_cvt_f32_u32 v104, v104")
    for j in range(1, 8):
        a(f"v_add_f32 v{104+j}, {fl(-2.0*j)}, v104")
    for p in range(4):
        a(f"v_cvt_pk_bf16_f32 v9, v{104+2*p}, v{105+2*p}")
        a(f"v_lshlrev_b32 v{104+2*p}, 16, v9")
        a(f"v_and_b32 v{105+2*p}, 0xffff0000, v9")
    for j in range(8):
        a(f"v_cvt_u32_f32 v{104+j}, v{104+j}")
    a("s_waitcnt lgkmcnt(8)"); mm(2)
    a("s_waitcnt lgkmcnt(0)"); mm(3)
    a("s_barrier")
    st()
    a(f"s_mul_i32 s12, s50, {KRP}")
    a(f"s_add_u32 s12, s12, 0x{KR:x}")
    a("v_mov_b32 v32, 0\nv_mov_b32 v33, 0\nv_mov_b32 v34, 0\nv_mov_b32 v35, 0")
    a("ds_write_b16 v15, v112 offset:4096")
    a("s_nop 0")
    a("v_cvt_pk_bf16_f32 v28, v24, v25")
    a("v_cvt_pk_bf16_f32 v29, v26, v27")
    a("ds_write_b16 v100, v28")
    a("ds_write_b16_d16_hi v101, v28")
    a("ds_write_b16 v102, v29")
    a("ds_write_b16_d16_hi v103, v29")
    a("s_waitcnt lgkmcnt(0)")
    a("s_barrier")
    for p in range(8):
        a(f"ds_read_u16 v{36+p}, v{104+p}")
    a("s_waitcnt lgkmcnt(0)")
    for p in range(4):
        a(f"v_lshl_or_b32 v{28+p}, v{37+2*p}, 16, v{36+2*p}")
    a("buffer_store_dwordx4 v[28:31], v8, s[80:83], s12 offen")
    st()
    if st.on:
        a("s_waitcnt vmcnt(0)")
        st()
        st.dump("s2", int(os.environ.get("SWG", "0")), "s7", 0, "L_kg_nd")
        a.label("L_kg_nd")
    a("v_cmp_gt_u32 vcc, 4, v0")
    a("s_and_saveexec_b64 s[14:15], vcc")
    a(f"s_cbranch_execz {END}")
    a("s_add_u32 s12, s12, 4096")
    a("buffer_store_dwordx4 v[32:35], v8, s[80:83], s12 offen")
    a(f"s_branch {END}")

def wave_reduce(a, regs, sdst):
    for sh in (1, 2, 4, 8):
        for r in regs:
            a(f"v_add_f32_dpp v{r}, v{r}, v{r} row_shr:{sh} row_mask:0xf bank_mask:0xf bound_ctrl:0")
    for r in regs:
        a(f"v_add_f32_dpp v{r}, v{r}, v{r} row_bcast:15 row_mask:0xa bank_mask:0xf")
    for r in regs:
        a(f"v_add_f32_dpp v{r}, v{r}, v{r} row_bcast:31 row_mask:0xc bank_mask:0xf")
    for r, s in zip(regs, sdst):
        a(f"v_readlane_b32 s{s}, v{r}, 63")

def gen_ln(a, st):
    a.label("L_ln")
    a("s_mov_b32 s3, s2")
    a("s_and_b32 s4, s3, 7")
    a("s_lshr_b32 s5, s3, 3")
    a("s_lshl_b32 s4, s4, 4")
    a("s_add_u32 s4, s4, s5")
    a("v_lshrrev_b32 v1, 6, v0")
    a("v_and_b32 v2, 63, v0")
    a("s_nop 0")
    a("v_readfirstlane_b32 s7, v1")
    a("s_lshl_b32 s8, s4, 4")
    a("s_lshl_b32 s9, s7, 2")
    a("s_add_u32 s8, s8, s9")
    a("s_mul_i32 s8, s8, 896")
    a("v_lshl_add_u32 v3, v2, 4, s8")
    a("v_cmp_gt_u32 vcc, 56, v2")
    a("s_mov_b64 s[10:11], vcc")
    a(f"v_mov_b32 v4, {fl(1.0/448)}")
    a(f"v_mov_b32 v5, {fl(1e-5)}")
    X = lambda rr, e: 32 + 8 * rr + e
    P = lambda rr, p: 16 + 4 * rr + p
    T = lambda rr, e: 64 + 8 * rr + e
    S = [8, 9, 10, 11]
    M = [12, 13, 14, 15]
    for i in range(16):
        a(f"v_mov_b32 v{16+i}, 0")
    a(f"v_mov_b32 v13, {fl(-64.0)}")
    a("s_mov_b64 exec, s[10:11]")
    for rr in range(4):
        a(f"global_load_dwordx4 {vr(P(rr,0))}, v3, s[16:17] offset:{896*rr}")
    a("s_mov_b64 exec, -1")
    a("s_mul_i32 s12, s9, 928")
    a("v_lshl_add_u32 v6, v2, 4, s12")
    a("v_and_b32 v7, 15, v2")
    a("s_waitcnt vmcnt(0)")
    st.n = 2; st()
    def unpack(rr):
        for p in range(4):
            a(f"v_lshlrev_b32 v{X(rr,2*p)}, 16, v{P(rr,p)}")
            a(f"v_and_b32 v{X(rr,2*p+1)}, 0xffff0000, v{P(rr,p)}")
    S2 = lambda rr: 96 + 2 * rr
    M2 = lambda rr: 104 + 2 * rr
    R2 = lambda rr: 112 + 2 * rr
    XP = lambda rr, p: f"v[{X(rr,2*p)}:{X(rr,2*p)+1}]"
    TP = lambda rr, p: f"v[{T(rr,2*p)}:{T(rr,2*p)+1}]"
    SP = lambda rr: f"v[{S2(rr)}:{S2(rr)+1}]"
    MP = lambda rr: f"v[{M2(rr)}:{M2(rr)+1}]"
    RP = lambda rr: f"v[{R2(rr)}:{R2(rr)+1}]"
    R4 = range(4)
    def ln_pass():
        for rr in R4: a(f"v_pk_add_f32 {SP(rr)}, {XP(rr,0)}, {XP(rr,1)}")
        for p in (2, 3):
            for rr in R4: a(f"v_pk_add_f32 {SP(rr)}, {SP(rr)}, {XP(rr,p)}")
        for rr in R4: a(f"v_add_f32 v{S2(rr)}, v{S2(rr)}, v{S2(rr)+1}")
        wave_reduce(a, [S2(rr) for rr in R4], [60, 61, 62, 63])
        a("s_nop 0")
        for rr in R4: a(f"v_mul_f32 v{M2(rr)}, s{60+rr}, v4")
        for p in range(4):
            for rr in R4: a(f"v_pk_add_f32 {TP(rr,p)}, {XP(rr,p)}, {MP(rr)} op_sel_hi:[1,0] neg_lo:[0,1] neg_hi:[0,1]")
        for rr in R4: a(f"v_pk_mul_f32 {SP(rr)}, {TP(rr,0)}, {TP(rr,0)}")
        for p in (1, 2, 3):
            for rr in R4: a(f"v_pk_fma_f32 {SP(rr)}, {TP(rr,p)}, {TP(rr,p)}, {SP(rr)}")
        for rr in R4: a(f"v_add_f32 v{S2(rr)}, v{S2(rr)}, v{S2(rr)+1}")
        wave_reduce(a, [S2(rr) for rr in R4], [60, 61, 62, 63])
        for rr in R4: a(f"v_mul_f32 v{R2(rr)}, v{M2(rr)}, v{M2(rr)}")
        for rr in R4: a(f"v_cvt_pk_bf16_f32 v{M2(rr)}, v{M2(rr)}, v{M2(rr)}")
        for rr in R4: a(f"v_fma_f32 v{R2(rr)}, v{R2(rr)}, v13, s{60+rr}")
        for rr in R4: a(f"v_lshlrev_b32 v{M2(rr)}, 16, v{M2(rr)}")
        for rr in R4: a(f"v_mul_f32 v{R2(rr)}, v{R2(rr)}, v4")
        for rr in R4: a(f"v_max_f32 v{R2(rr)}, 0, v{R2(rr)}")
        def rnd():
            for rr in R4: a(f"v_cvt_pk_bf16_f32 v{R2(rr)}, v{R2(rr)}, v{R2(rr)}")
            for rr in R4: a(f"v_lshlrev_b32 v{R2(rr)}, 16, v{R2(rr)}")
        rnd()
        for rr in R4: a(f"v_add_f32 v{R2(rr)}, v{R2(rr)}, v5")
        rnd()
        for rr in R4: a(f"v_sqrt_f32 v{R2(rr)}, v{R2(rr)}")
        rnd()
        for rr in R4: a(f"v_rcp_f32 v{R2(rr)}, v{R2(rr)}")
        for p in range(4):
            for rr in R4: a(f"v_pk_add_f32 {TP(rr,p)}, {XP(rr,p)}, {MP(rr)} op_sel_hi:[1,0] neg_lo:[0,1] neg_hi:[0,1]")
        for p in range(4):
            for rr in R4: a(f"v_cvt_pk_bf16_f32 v{X(rr,p)}, v{T(rr,2*p)}, v{T(rr,2*p+1)}")
        for p in range(4):
            for rr in R4:
                a(f"v_lshlrev_b32 v{T(rr,2*p)}, 16, v{X(rr,p)}")
                a(f"v_and_b32 v{T(rr,2*p+1)}, 0xffff0000, v{X(rr,p)}")
        for p in range(4):
            for rr in R4: a(f"v_pk_mul_f32 {TP(rr,p)}, {TP(rr,p)}, {RP(rr)} op_sel_hi:[1,0]")
        a("s_mov_b64 exec, s[10:11]")
        for p in range(4):
            for rr in R4: a(f"v_cvt_pk_bf16_f32 v{P(rr,p)}, v{T(rr,2*p)}, v{T(rr,2*p+1)}")
        a("s_mov_b64 exec, -1")
    for rr in range(4):
        unpack(rr)
    ln_pass()
    a("s_mov_b64 exec, s[10:11]")
    for rr in range(4):
        a(f"ds_write_b128 v6, {vr(P(rr,0))} offset:{928*rr}")
    a("s_mov_b64 exec, -1")
    st()
    for rr in range(4):
        unpack(rr)
    ln_pass()
    st()
    a("v_lshlrev_b32 v6, 8, v2")
    for rr in range(4):
        a(f"s_add_u32 s12, s9, {rr}")
        a(f"v_xor_b32 v{S[rr]}, s12, v7")
        a(f"v_lshl_add_u32 v{S[rr]}, v{S[rr]}, 4, v6")
    a("s_mov_b64 exec, s[10:11]")
    for rr in range(4):
        a(f"ds_write_b128 v{S[rr]}, {vr(P(rr,0))} offset:14848")
    a("s_mov_b64 exec, -1")
    a("v_lshrrev_b32 v8, 2, v2")
    a("v_mul_u32_u24 v8, 928, v8")
    a("v_and_b32 v9, 3, v2")
    a("v_lshl_add_u32 v8, v9, 3, v8")
    a("s_lshl_b32 s12, s7, 5")
    a("v_add_u32 v8, s12, v8")
    a("v_lshrrev_b32 v9, 4, v2")
    a("v_lshlrev_b32 v9, 3, v9")
    a("v_lshl_add_u32 v9, v7, 5, v9")
    a("s_mul_i32 s13, s4, 14336")
    a("s_lshl_b32 s12, s7, 9")
    a("s_add_u32 s12, s12, s13")
    a(f"s_add_u32 s12, s12, 0x{XNT:x}")
    a("v_lshlrev_b32 v10, 4, v0")
    a("v_bfe_u32 v11, v0, 4, 4")
    a("v_and_b32 v12, 15, v0")
    a("v_xor_b32 v12, v12, v11")
    a("v_lshrrev_b32 v11, 4, v0")
    a("v_lshlrev_b32 v11, 8, v11")
    a("v_lshl_add_u32 v11, v12, 4, v11")
    a("s_waitcnt lgkmcnt(0)")
    a("s_barrier")
    st()
    for k in range(7):
        a(f"ds_read_b64_tr_b16 v[{32+2*k}:{33+2*k}], v8 offset:{128*k}")
    for p in range(3):
        a(f"ds_read_b128 {vr(48+4*p)}, v10 offset:{14848+4096*p}")
    for k in range(7):
        a(f"s_waitcnt lgkmcnt({9-k})")
        a(f"buffer_store_dwordx2 v[{32+2*k}:{33+2*k}], v9, s[80:83], s12 offen")
        a("s_add_u32 s12, s12, 2048")
    for p in range(3):
        a(f"s_waitcnt lgkmcnt({2-p})")
        a(f"buffer_store_dwordx4 {vr(48+4*p)}, v11, s[80:83], s13 offen")
        a("s_add_u32 s13, s13, 4096")
    st()
    if st.on:
        a("s_waitcnt vmcnt(0)")
        st()
        st.dump("s2", int(os.environ.get("SWG", "0")), "s7", 0, "L_ln_nd")
        a.label("L_ln_nd")
    a("s_cmp_ge_u32 s7, 2")
    a("s_cbranch_scc1 L_end1")
    a(f"ds_read_b128 {vr(60)}, v10 offset:{14848+4096*3}")
    a("s_waitcnt lgkmcnt(0)")
    a(f"buffer_store_dwordx4 {vr(60)}, v11, s[80:83], s13 offen")
    a("s_branch L_end1")

def gen_relayout(a, st):
    a.label("L_rel")
    a("s_sub_u32 s3, s2, 128")
    a("s_cmp_eq_u32 s3, 0")
    a("s_cbranch_scc0 L_rel_nz")
    a("v_lshlrev_b32 v3, 2, v0")
    a("v_mov_b32 v4, 0")
    a(f"s_mov_b32 s4, 0x{CNT:x}")
    a("buffer_store_dword v4, v3, s[80:83], s4 offen")
    a.label("L_rel_nz")
    a("v_lshrrev_b32 v1, 6, v0")
    a("v_and_b32 v2, 63, v0")
    a("s_nop 0")
    a("v_readfirstlane_b32 s7, v1")
    a("s_lshl_b32 s3, s3, 2")
    a("s_add_u32 s3, s3, s7")
    srd(a, 84, 36, 448*1792*2)
    srd(a, 88, 40, 448*1792*2)
    a("s_mov_b32 s4, 613566757")
    a("s_mul_hi_u32 s5, s3, s4")
    a("s_mul_i32 s6, s5, 7")
    a("s_sub_u32 s6, s3, s6")
    a(f"s_mul_i32 s8, s5, {8*3584}")
    a("s_lshl_b32 s9, s6, 9")
    a("s_add_u32 s8, s8, s9")
    a("v_lshlrev_b32 v3, 3, v2")
    for j in range(8):
        a(f"buffer_load_dwordx2 v[{16+2*j}:{17+2*j}], v3, s[84:87], s8 offen")
        a("s_add_u32 s8, s8, 3584")
    a("s_lshl_b32 s8, s3, 6")
    a("v_add_u32 v4, s8, v2")
    a("s_mov_b32 s9, 38347923")
    a("v_mul_hi_u32 v5, v4, s9")
    a("v_mul_u32_u24 v6, 112, v5")
    a("v_sub_u32 v6, v4, v6")
    a("v_lshrrev_b32 v7, 2, v5")
    a("v_and_b32 v8, 3, v5")
    a("v_lshlrev_b32 v9, 5, v7")
    a("v_lshl_add_u32 v9, v8, 2, v9")
    a("v_mul_u32_u24 v9, 896, v9")
    a("v_lshl_add_u32 v9, v6, 3, v9")
    a("s_mov_b32 s10, 14336")
    for j in range(8):
        so = "0" if j < 4 else "s10"
        a(f"buffer_load_dwordx2 v[{32+2*j}:{33+2*j}], v9, s[88:91], {so} offen offset:{896*(j&3)}")
    a("v_lshrrev_b32 v10, 2, v2")
    a("v_mul_u32_u24 v10, 14336, v10")
    a("v_and_b32 v11, 3, v2")
    a("v_lshl_add_u32 v10, v11, 6, v10")
    a(f"s_mul_i32 s11, s6, {16*14336}")
    a("s_lshl_b32 s12, s5, 8")
    a("s_add_u32 s11, s11, s12")
    a(f"s_add_u32 s11, s11, 0x{W1F:x}")
    a("v_lshrrev_b32 v12, 2, v6")
    a("v_mul_u32_u24 v12, 57344, v12")
    a("v_lshl_add_u32 v12, v5, 8, v12")
    a("v_and_b32 v13, 3, v6")
    a("v_lshl_add_u32 v12, v13, 6, v12")
    a(f"s_mov_b32 s12, 0x{W2F:x}")
    a("s_mov_b32 s13, 0x05040100")
    a("s_mov_b32 s14, 0x07060302")
    def tr(src, dst, vaddr, soff):
        for e in range(4):
            sel = "s13" if e % 2 == 0 else "s14"
            for p in range(4):
                a(f"v_perm_b32 v{dst+4*e+p}, v{src+2*(2*p+1)+(e>>1)}, v{src+2*(2*p)+(e>>1)}, {sel}")
            a(f"buffer_store_dwordx4 {vr(dst+4*e)}, v{vaddr}, s[80:83], {soff} offen offset:{16*e}")
    st.n = 2; st()
    a("s_waitcnt vmcnt(8)")
    st()
    tr(16, 48, 10, "s11")
    a("s_waitcnt vmcnt(4)")
    st()
    tr(32, 64, 12, "s12")
    st()
    if st.on:
        a("s_waitcnt vmcnt(0)")
        st()
        st.dump("s2", int(os.environ.get("SWG", "0")), "s7", 0, "L_end1")

def gen_k1():
    a = Asm()
    a.raw(khead("prep_kernel"))
    a(f"s_cmp_ge_u32 s2, {226+C1N}")
    a("s_cbranch_scc1 L_exit1")
    rt_start(a)
    st = Stamper(a, STAMP == "1")
    st()
    a("s_load_dwordx16 s[16:31], s[0:1], 0")
    a("s_load_dwordx16 s[32:47], s[0:1], 64")
    a("s_load_dwordx2 s[48:49], s[0:1], 128")
    a("s_waitcnt lgkmcnt(0)")
    st()
    srd(a, 80, 48, WS_END)
    a("s_cmp_lt_u32 s2, 128")
    a("s_cbranch_scc1 L_ln")
    a("s_cmp_lt_u32 s2, 226")
    a("s_cbranch_scc1 L_rel")
    a("s_sub_u32 s50, s2, 226")
    gen_kgen(a, st)
    gen_ln(a, st)
    gen_relayout(a, st)
    a.label("L_end1")
    a("s_mov_b64 exec, -1")
    rt_end(a, 1)
    a.label("L_exit1")
    a("s_endpgm")
    return a.text()
```

```python
from gen_common import *
from gen_k1 import gen_kgen
LOG2E = 1.4426950408889634
C1 = -2.0 * 0.7978845608028654 * LOG2E
C2 = C1 * 0.044715
K2GRID = 224 + 448 - C1N

def gen_k2():
    a = Asm()
    a.raw(khead("mid_kernel"))
    a(f"s_cmp_ge_u32 s2, {K2GRID}")
    a("s_cbranch_scc1 L_exit2")
    rt_start(a)
    st = Stamper(a, STAMP == "2")
    st()
    a("s_cmp_ge_u32 s2, 224")
    a("s_cbranch_scc1 L_k2_kgen")
    a("s_load_dwordx2 s[18:19], s[0:1], 88")
    a("s_load_dwordx2 s[20:21], s[0:1], 128")
    a("v_lshrrev_b32 v1, 6, v0")
    a("v_and_b32 v2, 63, v0")
    a("v_bfe_u32 v4, v0, 4, 2")
    a("v_readfirstlane_b32 s3, v1")
    a("s_and_b32 s4, s2, 7")
    a("s_lshr_b32 s5, s2, 3")
    a("s_cmp_ge_u32 s5, 14")
    a("s_cselect_b32 s6, 1, 0")
    a("s_mul_i32 s7, s6, 14")
    a("s_sub_u32 s7, s5, s7")
    a("s_lshl_b32 s4, s4, 1")
    a("s_add_u32 s6, s6, s4")
    a("v_lshlrev_b32 v5, 4, v2")
    a("s_lshl_b32 s15, s6, 3")
    a("s_lshl_b32 s22, s3, 1")
    a("s_add_u32 s15, s15, s22")
    a("s_mul_i32 s22, s15, 14336")
    a("s_add_u32 s23, s22, 14336")
    a("s_lshl_b32 s32, s7, 3")
    a("s_lshl_b32 s33, s3, 1")
    a("s_add_u32 s32, s32, s33")
    a("s_mul_i32 s32, s32, 14336")
    a(f"s_add_u32 s32, s32, 0x{W1F:x}")
    a("s_add_u32 s33, s32, 14336")
    a("s_mul_i32 s34, s3, 20480")
    a("s_add_u32 s35, s34, 10240")
    a("v_add_u32 v6, 40960, v5")
    a("s_waitcnt lgkmcnt(0)")
    srd(a, 24, 20, WS_END)
    srd(a, 28, 18, 3584)
    GA = 16; WB = lambda b, ft: 80 + 32*b + 4*ft
    YB = lambda mi, k: 144 + 4*(14*mi + k)
    def dma(k):
        slot = k if k < 10 else k - 10
        for j in range(2):
            a(f"s_add_u32 s36, s{34+j}, {slot*1024}")
            a("s_mov_b32 m0, s36")
            a(f"s_add_u32 s37, s{32+j}, {k*1024}")
            a("buffer_load_dwordx4 v5, s[24:27], s37 offen lds")
    def yld(k):
        for mi in range(2):
            if k % 4 == 0 and k:
                a(f"s_add_u32 s{22+mi}, s{22+mi}, 4096")
            a(f"buffer_load_dwordx4 {vr(YB(mi,k))}, v5, s[24:27], s{22+mi} offen offset:{1024*(k&3)}")
    for k in range(14):
        if k < 10: dma(k)
        yld(k)
    st()
    def wrd(k):
        slot = k if k < 10 else k - 10
        for ft in range(8):
            b = "v5" if ft < 4 else "v6"
            a(f"ds_read_b128 {vr(WB(k&1,ft))}, {b} offset:{(ft&3)*10240 + slot*1024}")
    def gmm(k):
        for ft in range(8):
            for mi in range(2):
                c = "0" if k == 0 else vr(GA+8*ft+4*mi)
                a(f"v_mfma_f32_16x16x32_bf16 {vr(GA+8*ft+4*mi)}, {vr(WB(k&1,ft))}, {vr(YB(mi,k))}, {c}")
    def phase(k0, k1):
        wrd(k0)
        for k in range(k0, k1):
            if k + 1 < k1:
                wrd(k+1); a("s_waitcnt lgkmcnt(8)")
            else:
                a("s_waitcnt lgkmcnt(0)")
            gmm(k)
    a("s_waitcnt vmcnt(32)")
    a("s_barrier")
    st()
    phase(0, 4)
    a("s_barrier")
    for k in range(10, 14): dma(k)
    BB = YB(0, 0)
    a("v_lshlrev_b32 v7, 3, v4")
    a("s_lshl_b32 s38, s7, 8")
    for ft in range(8):
        a(f"buffer_load_dwordx2 v[{BB+2*ft}:{BB+2*ft+1}], v7, s[28:31], s38 offen offset:{32*ft}")
    st()
    a("s_waitcnt vmcnt(24)")
    a("s_barrier")
    st()
    phase(4, 10)
    st()
    a("s_waitcnt vmcnt(0)")
    a("s_barrier")
    st()
    phase(10, 14)
    st()
    a(f"s_mov_b32 s36, {fl(C1)}")
    a(f"v_mov_b32 v8, {fl(C2)}")
    a("s_mul_i32 s15, s15, 57344")
    a("s_lshl_b32 s33, s7, 12")
    a("s_add_u32 s15, s15, s33")
    a(f"s_add_u32 s15, s15, 0x{HF:x}")
    a("s_add_u32 s16, s15, 57344")
    BF = 176
    for ft in range(8):
        for h in range(2):
            a(f"v_lshlrev_b32 v{BF+4*ft+2*h}, 16, v{BB+2*ft+h}")
            a(f"v_and_b32 v{BF+4*ft+2*h+1}, 0xffff0000, v{BB+2*ft+h}")
    pp = lambda r: f"v[{r}:{r+1}]"
    n = 0
    for mi in range(2):
        for p in range(4):
            X = [GA+8*(2*p+h)+4*mi+i for h in range(2) for i in (0, 2)]
            Q = [BF+4*(2*p+h)+i for h in range(2) for i in (0, 2)]
            TB = 80 + 8*(n & 1)
            T = [TB+2*j for j in range(4)]
            O = 96 + 4*n
            for j in range(4): a(f"v_pk_add_f32 {pp(X[j])}, {pp(X[j])}, {pp(Q[j])}")
            for j in range(4): a(f"v_pk_mul_f32 {pp(T[j])}, {pp(X[j])}, {pp(X[j])}")
            for j in range(4): a(f"v_pk_fma_f32 {pp(T[j])}, {pp(T[j])}, v[8:9], s[36:37] op_sel_hi:[1,0,0]")
            for j in range(4): a(f"v_pk_mul_f32 {pp(T[j])}, {pp(T[j])}, {pp(X[j])}")
            for j in range(8): a(f"v_exp_f32 v{TB+j}, v{TB+j}")
            for j in range(4): a(f"v_pk_add_f32 {pp(T[j])}, {pp(T[j])}, 1.0 op_sel_hi:[1,0]")
            for j in range(8): a(f"v_rcp_f32 v{TB+j}, v{TB+j}")
            for j in range(4): a(f"v_pk_mul_f32 {pp(T[j])}, {pp(T[j])}, {pp(X[j])}")
            for j in range(4): a(f"v_cvt_pk_bf16_f32 v{O+j}, v{TB+2*j}, v{TB+2*j+1}")
            a(f"buffer_store_dwordx4 {vr(O)}, v5, s[24:27], s{15+mi} offen offset:{1024*p}")
            n += 1
    st()
    if st.on:
        a("s_waitcnt vmcnt(0)")
        st()
        st.dump("s2", int(os.environ.get("SWG", "0")), "s3", int(os.environ.get("SWAVE", "0")), "L_end2")
    a("s_branch L_end2")
    a.label("L_k2_kgen")
    a("s_load_dwordx16 s[16:31], s[0:1], 0")
    a("s_load_dwordx2 s[48:49], s[0:1], 128")
    a(f"s_add_u32 s50, s2, {C1N - 224}")
    a("s_waitcnt lgkmcnt(0)")
    srd(a, 80, 48, WS_END)
    gen_kgen(a, Stamper(a, False), "L_end2")
    a.label("L_end2")
    a("s_mov_b64 exec, -1")
    rt_end(a, 2)
    a.label("L_exit2")
    a("s_endpgm")
    return a.text()
```

```python
from gen_common import *
DEPTH = 5
YS = 0
RB = 10240
KP = int(os.environ.get("KP", "11"))
CH = 37888
UO = 33280

def gen_conv(a):
    a.label("L_conv")
    a("s_load_dwordx2 s[16:17], s[0:1], 64")
    a("s_load_dwordx2 s[20:21], s[0:1], 128")
    a("s_sub_u32 s4, s2, 224")
    a("v_lshrrev_b32 v1, 6, v0")
    a("v_and_b32 v2, 63, v0")
    a("v_and_b32 v3, 15, v0")
    a("v_bfe_u32 v4, v0, 4, 2")
    a("v_readfirstlane_b32 s8, v1")
    a("v_lshlrev_b32 v5, 4, v2")
    a("v_lshlrev_b32 v6, 4, v0")
    a(f"v_add_u32 v232, {CH}, v6")
    a(f"s_mul_i32 s13, s4, {2*KRP}")
    a(f"s_add_u32 s13, s13, 0x{KR:x}")
    a(f"s_add_u32 s12, s13, {KRP}")
    a("v_lshrrev_b32 v7, 2, v0")
    a("v_mul_u32_u24 v28, 14336, v7")
    a("v_and_b32 v29, 3, v0")
    a("v_lshl_add_u32 v28, v29, 4, v28")
    a("s_lshl_b32 s14, s4, 6")
    a(f"s_add_u32 s14, s14, 0x{XNT:x}")
    a(f"s_add_u32 s15, s14, {64*14336}")
    a("s_lshl_b32 s10, s4, 2")
    a("s_waitcnt lgkmcnt(0)")
    srd(a, 24, 20, WS_END)
    a("s_load_dword s11, s[16:17], s10")
    a("buffer_load_dwordx4 v[8:11], v6, s[24:27], s13 offen")
    a("buffer_load_dwordx4 v[12:15], v6, s[24:27], s13 offen offset:16")
    a("buffer_load_dwordx4 v[16:19], v6, s[24:27], s12 offen")
    a("buffer_load_dwordx4 v[20:23], v6, s[24:27], s12 offen offset:16")
    a("buffer_load_dwordx4 v[224:227], v28, s[24:27], s14 offen")
    a("buffer_load_dwordx4 v[228:231], v28, s[24:27], s15 offen")
    a("v_lshrrev_b32 v30, 1, v29")
    a(f"v_mul_u32_u24 v30, {CH}, v30")
    a("v_lshl_add_u32 v30, v7, 5, v30")
    a("v_and_b32 v29, 1, v29")
    a("v_lshl_add_u32 v31, v29, 4, v30")
    for i in range(4):
        a(f"v_mov_b32 v{24+i}, 0")
    a("v_cmp_gt_u32 vcc, 32, v0")
    a("v_cmp_gt_u32 s[40:41], 8, v0")
    a("v_mul_u32_u24 v28, 4160, v0")
    a("s_mov_b64 exec, vcc")
    for ch in range(2):
        a(f"ds_write_b128 v{232 if ch else 6}, v[24:27] offset:{UO}")
    a("s_mov_b64 exec, s[40:41]")
    for ch in range(2):
        a(f"ds_write_b128 v28, v[24:27] offset:{ch*CH+4096}")
    a("s_mov_b64 exec, -1")
    a("v_and_b32 v29, 7, v3")
    a("v_sub_u32 v29, 7, v29")
    a("v_mul_u32_u24 v29, 4160, v29")
    a("v_lshrrev_b32 v30, 1, v4")
    a("v_and_b32 v28, 1, v4")
    a("v_lshrrev_b32 v32, 3, v3")
    a("v_lshlrev_b32 v33, 1, v30")
    a("v_add_u32 v33, v33, v32")
    a("v_sub_u32 v33, v28, v33")
    a("v_lshl_add_u32 v29, v33, 4, v29")
    a("s_lshl_b32 s37, s8, 7")
    a(f"s_sub_u32 s38, {16*255 - 64 - 3584}, s37")
    a("v_add_u32 v29, s38, v29")
    a("v_sub_u32 v33, v3, v30")
    a("v_lshlrev_b32 v33, 5, v33")
    a("v_lshl_add_u32 v33, v28, 4, v33")
    a(f"s_sub_u32 s38, {UO + 512 - 64}, s37")
    a("v_add_u32 v30, s38, v33")
    for ch in range(2):
        a(f"s_waitcnt vmcnt({4-2*ch})")
        D = lambda i: 8 + 8*ch + i
        SA = 32 + 20*ch; SB = SA + 6; DB = SA + 12
        for i in range(6):
            a(f"v_alignbit_b32 v{SA+i}, v{D(i+1)}, v{D(i)}, 16")
        for i in range(6):
            a(f"v_alignbit_b32 v{SB+i}, v{D(i+2)}, v{D(i+1)}, 16")
        for i in range(6):
            a(f"v_mov_b32 v{DB+i}, v{D(i+1)}")
        src = {0: D(0), 4: D(2), 1: SA, 5: SA+2, 3: SB, 7: SB+2, 2: DB, 6: DB+2}
        for c in (0, 4, 1, 5, 3, 7, 2, 6):
            a(f"ds_write_b128 v{232 if ch else 6}, {vr(src[c])} offset:{c*4160}")
    a("s_waitcnt vmcnt(0)")
    a(f"ds_write_b128 v31, v[224:227] offset:{UO+512}")
    a(f"ds_write_b128 v31, v[228:231] offset:{UO+512+2048}")
    a("s_waitcnt lgkmcnt(0)")
    a("s_barrier")
    ACCS = [32, 192]
    FA = lambda s, i: 64 + 64*s + 4*i
    FB = lambda s, i: 96 + 64*s + 4*i
    def rd(ch, s, half):
        for i in range(4*half, 4*half+4):
            a(f"ds_read_b128 {vr(FA(s,i))}, v29 offset:{ch*CH + (7-i)*512 + (1-s)*64}")
            a(f"ds_read_b128 {vr(FB(s,i))}, v30 offset:{ch*CH + 512*i + (1-s)*64}")
    first = set()
    def mm(ch, s, ia, ib):
        t = ia + ib; A = ACCS[ch]
        c = vr(A+4*t) if (ch, t) in first else "0"
        first.add((ch, t))
        a(f"v_mfma_f32_16x16x32_bf16 {vr(A+4*t)}, {vr(FA(s,ia))}, {vr(FB(s,ib))}, {c}")
    def lo(ch, s):
        for ia in range(4):
            for ib in range(4):
                mm(ch, s, ia, ib)
    def hi(ch, s):
        for ia in range(4, 8):
            for ib in range(0, 8-ia):
                mm(ch, s, ia, ib); mm(ch, s, ib, ia)
    seq = [(0, 0), (0, 1), (1, 0), (1, 1)]
    rd(0, 0, 0); rd(0, 0, 1)
    for n, (ch, s) in enumerate(seq):
        nx = seq[n+1] if n + 1 < 4 else None
        a("s_waitcnt lgkmcnt(8)"); lo(ch, s)
        if nx: rd(nx[0], nx[1], 0)
        a(f"s_waitcnt lgkmcnt({8 if nx else 0})"); hi(ch, s)
        if nx: rd(nx[0], nx[1], 1)
    a("s_barrier")
    a("s_lshl_b32 s37, s8, 13")
    a("v_add_u32 v6, s37, v5")
    a("s_lshl_b32 s38, s8, 11")
    a("v_add_u32 v7, s38, v5")
    a("v_lshlrev_b32 v8, 5, v3")
    a("v_lshl_add_u32 v8, v4, 3, v8")
    a("s_lshl_b32 s39, s8, 10")
    a("v_add_u32 v9, s39, v8")
    a(f"v_add_u32 v233, {CH}, v9")
    a("s_lshl_b32 s41, s4, 13")
    a("s_add_u32 s41, s41, s39")
    a(f"s_add_u32 s41, s41, 0x{YAT:x}")
    a("s_add_u32 s42, s41, 4096")
    a("s_lshl_b32 s44, s11, 16")
    a("s_and_b32 s45, s11, 0xffff0000")
    for ch in range(2):
        for t in range(8):
            a(f"ds_write_b128 v6, {vr(ACCS[ch]+4*t)} offset:{ch*CH + 1024*t}")
    for ch in range(2):
        a(f"ds_read_b64 v[{10+4*ch}:{11+4*ch}], v{233 if ch else 9} offset:{UO+512}")
        a(f"ds_read_b64 v[{12+4*ch}:{13+4*ch}], v{233 if ch else 9} offset:{UO+512+512}")
    a("s_waitcnt lgkmcnt(0)")
    a("s_barrier")
    for ch in range(2):
        for p in range(4):
            for tt in range(2):
                a(f"ds_read_b128 {vr(64+32*ch+8*p+4*tt)}, v7 offset:{ch*CH + 8192*p + 1024*tt}")
    for ch in range(2):
        S = 128 + 8*ch; Pk = 144 + 4*ch
        for tt in range(2):
            for h in range(2):
                a(f"v_lshlrev_b32 v{S+4*tt+2*h}, 16, v{10+4*ch+2*tt+h}")
                a(f"v_and_b32 v{S+1+4*tt+2*h}, 0xffff0000, v{10+4*ch+2*tt+h}")
        for i in range(8):
            a(f"v_mul_f32 v{S+i}, s{44+ch}, v{S+i}")
        for i in range(4):
            a(f"v_cvt_pk_bf16_f32 v{Pk+i}, v{S+2*i}, v{S+1+2*i}")
        for i in range(4):
            a(f"v_lshlrev_b32 v{S+2*i}, 16, v{Pk+i}")
            a(f"v_and_b32 v{S+1+2*i}, 0xffff0000, v{Pk+i}")
    for ch in range(2):
        S = 128 + 8*ch; Pk = 144 + 4*ch; B = 64 + 32*ch
        a(f"s_waitcnt lgkmcnt({8-8*ch})")
        for p in (1, 3):
            for i in range(8):
                a(f"v_add_f32 v{B+8*(p-1)+i}, v{B+8*(p-1)+i}, v{B+8*p+i}")
        for i in range(8):
            a(f"v_add_f32 v{B+i}, v{B+i}, v{B+16+i}")
        for i in range(4):
            a(f"v_cvt_pk_bf16_f32 v{Pk+i}, v{B+2*i}, v{B+1+2*i}")
        for i in range(4):
            a(f"v_lshlrev_b32 v{B+2*i}, 16, v{Pk+i}")
            a(f"v_and_b32 v{B+1+2*i}, 0xffff0000, v{Pk+i}")
        for i in range(8):
            a(f"v_add_f32 v{B+i}, v{B+i}, v{S+i}")
        for i in range(4):
            a(f"v_cvt_pk_bf16_f32 v{Pk+i}, v{B+2*i}, v{B+1+2*i}")
        a.raw(f"    buffer_store_dwordx2 v[{Pk}:{Pk+1}], v8, s[24:27], s{41+ch} offen sc0 sc1")
        a.raw(f"    buffer_store_dwordx2 v[{Pk+2}:{Pk+3}], v8, s[24:27], s{41+ch} offen offset:512 sc0 sc1")
    a("s_lshr_b32 s43, s4, 5")
    a("s_lshl_b32 s43, s43, 7")
    a(f"s_add_u32 s43, s43, 0x{CNT:x}")
    a("v_mov_b32 v1, 0")
    a("v_mov_b32 v2, 1")
    a("s_waitcnt vmcnt(0)")
    a("s_barrier")
    a("v_cmp_eq_u32 vcc, 0, v0")
    a("s_and_saveexec_b64 s[46:47], vcc")
    a("s_cbranch_execz L_end3")
    a("buffer_atomic_add v2, v1, s[24:27], s43 offen sc1")

def gen_k3():
    a = Asm()
    a.raw(khead(NAME + "_kernel"))
    a("s_cmp_ge_u32 s2, 448")
    a("s_cbranch_scc1 L_exit3")
    rt_start(a)
    st = Stamper(a, STAMP == "3")
    st()
    a("s_cmp_ge_u32 s2, 224")
    a("s_cbranch_scc1 L_conv")
    a("s_load_dwordx2 s[16:17], s[0:1], 0")
    a("s_load_dwordx4 s[20:23], s[0:1], 104")
    a("s_load_dwordx2 s[18:19], s[0:1], 128")
    a("v_lshrrev_b32 v1, 6, v0")
    a("v_and_b32 v2, 63, v0")
    a("v_and_b32 v3, 15, v0")
    a("v_bfe_u32 v4, v0, 4, 2")
    a("v_readfirstlane_b32 s3, v1")
    a(f"s_add_u32 s4, s2, {int(os.environ.get('XSH', '0'))}")
    a("s_and_b32 s4, s4, 7")
    a("s_lshr_b32 s5, s2, 3")
    a("s_mov_b32 s6, 613566757")
    a("s_mul_hi_u32 s6, s5, s6")
    a("s_mul_i32 s7, s6, 7")
    a("s_sub_u32 s7, s5, s7")
    a("s_lshl_b32 s4, s4, 2")
    a("s_add_u32 s6, s6, s4")
    a("v_lshlrev_b32 v5, 4, v2")
    a("s_waitcnt lgkmcnt(0)")
    st()
    srd(a, 24, 18, WS_END)
    srd(a, 28, 16, 2048*448*2)
    srd(a, 32, 22, 2048*448*2)
    srd(a, 36, 20, 896)
    a("s_mul_i32 s8, s3, 14336")
    a(f"s_mul_i32 s9, s7, {4*57344}")
    a("s_add_u32 s9, s9, s8")
    a(f"s_add_u32 s40, s9, 0x{W2F:x}")
    a(f"s_mul_i32 s9, s6, {4*57344}")
    a("s_add_u32 s9, s9, s8")
    a(f"s_add_u32 s44, s9, 0x{HF:x}")
    for i in range(1, 4):
        a(f"s_add_u32 s{40+i}, s{39+i}, 57344")
        a(f"s_add_u32 s{44+i}, s{43+i}, 57344")
    ACC = 16
    FR = lambda slot, i: 80 + 32*slot + 4*i
    ROT = os.environ.get("ROT", "1") == "1"
    a("s_and_b32 s48, s6, 3")
    a("s_lshl_b32 s48, s48, 1")
    a("s_add_u32 s48, s48, s7")
    a("s_lshl_b32 s48, s48, 1")
    a("s_cmp_ge_u32 s48, 14")
    a("s_cselect_b32 s49, 14, 0")
    a("s_sub_u32 s48, s48, s49")
    a("s_lshl_b32 s48, s48, 10")
    if not ROT:
        a("s_mov_b32 s48, 0")
    def ld(k):
        slot = k % DEPTH
        a("v_add_u32 v14, s48, v5")
        a("s_add_u32 s48, s48, 1024")
        a("s_cmp_eq_u32 s48, 14336")
        a("s_cselect_b32 s48, 0, s48")
        for i in (0, 4, 1, 5, 2, 6, 3, 7):
            a(f"buffer_load_dwordx4 {vr(FR(slot,i))}, v14, s[24:27], s{40+i} offen")
    ld(0); st(); ld(1); st()
    a("v_lshrrev_b32 v6, 2, v0")
    a("v_and_b32 v7, 3, v0")
    a("v_lshlrev_b32 v8, 12, v6")
    a("v_lshl_add_u32 v8, v7, 5, v8")
    a("s_lshl_b32 s9, s7, 18")
    a("s_lshl_b32 s10, s6, 7")
    a("s_add_u32 s9, s9, s10")
    a(f"s_add_u32 s50, s9, 0x{YAT:x}")
    a("s_lshl_b32 s51, s7, 7")
    a(f"s_add_u32 s51, s51, 0x{CNT:x}")
    a("v_mov_b32 v1, 0")
    a("s_mov_b32 s53, 0")
    a("v_mul_u32_u24 v9, 160, v6")
    a("v_lshl_add_u32 v9, v7, 5, v9")
    a("v_mul_u32_u24 v10, 896, v3")
    a("v_lshl_add_u32 v10, v4, 3, v10")
    a(f"s_mul_i32 s10, s6, {64*896}")
    a("s_lshl_b32 s11, s7, 7")
    a("s_add_u32 s10, s10, s11")
    a("s_lshl_b32 s12, s3, 5")
    a("s_add_u32 s10, s10, s12")
    a("s_add_u32 s12, s12, s11")
    a("s_mov_b32 s13, s10")
    for j in range(4):
        a(f"buffer_load_dwordx2 v[{248+2*j}:{249+2*j}], v10, s[28:31], s13 offen")
        a("s_add_u32 s13, s13, 14336")
    a("v_lshlrev_b32 v11, 3, v4")
    a("buffer_load_dwordx2 v[12:13], v11, s[36:39], s12 offen")
    for k in range(2, DEPTH):
        ld(k)
    for k in range(14):
        later = min(k + DEPTH - 1, 13) - k
        n = 8 * later + (5 if k < 2 else 0)
        if KP - DEPTH < k < KP: n += 1
        if k > KP: n += 2
        a(f"s_waitcnt vmcnt({n})")
        if k == KP:
            a("v_readfirstlane_b32 s52, v15")
            a("s_cmp_ge_u32 s52, 32")
            a("s_cbranch_scc1 L_k3_ok")
            a.label("L_k3_spin")
            a("s_sleep 4")
            a("buffer_load_dword v15, v1, s[24:27], s51 offen sc0 sc1")
            a("s_add_u32 s53, s53, 1")
            a("s_waitcnt vmcnt(0)")
            a("v_readfirstlane_b32 s52, v15")
            a("s_lshr_b32 s54, s53, 10")
            a("s_add_u32 s52, s52, s54")
            a("s_cmp_ge_u32 s52, 32")
            a("s_cbranch_scc0 L_k3_spin")
            a.label("L_k3_ok")
            a("buffer_load_dwordx4 v[240:243], v8, s[24:27], s50 offen sc0 sc1")
            a("buffer_load_dwordx4 v[244:247], v8, s[24:27], s50 offen offset:16 sc0 sc1")
        if k in (0, 4, KP, 13): st()
        slot = k % DEPTH
        for i in range(4):
            for j in range(4):
                c = "0" if k == 0 else vr(ACC+16*i+4*j)
                a(f"v_mfma_f32_16x16x32_bf16 {vr(ACC+16*i+4*j)}, {vr(FR(slot,i))}, {vr(FR(slot,4+j))}, {c}")
        if k + DEPTH < 14:
            ld(k + DEPTH)
        if k + DEPTH == KP:
            a("buffer_load_dword v15, v1, s[24:27], s51 offen sc0 sc1")
    a("s_lshl_b32 s9, s3, 14")
    a(f"s_add_u32 s9, s9, {RB}")
    a("v_add_u32 v6, s9, v5")
    a("s_lshl_b32 s9, s3, 12")
    a(f"s_add_u32 s9, s9, {RB}")
    a("v_add_u32 v7, s9, v5")
    a("v_lshrrev_b32 v8, 2, v2")
    a("s_lshl_b32 s9, s3, 4")
    a("v_add_u32 v8, s9, v8")
    a("v_mul_u32_u24 v8, 160, v8")
    a("v_and_b32 v14, 3, v2")
    a("v_lshl_add_u32 v8, v14, 3, v8")
    for t in range(16):
        a(f"ds_write_b128 v6, {vr(ACC+4*t)} offset:{1024*t}")
    a("s_waitcnt vmcnt(0)")
    a(f"ds_write_b128 v9, v[240:243] offset:{YS}")
    a(f"ds_write_b128 v9, v[244:247] offset:{YS+16}")
    a("s_waitcnt lgkmcnt(0)")
    st()
    a("s_barrier")
    st()
    for j in range(4):
        a(f"ds_read_b64_tr_b16 v[{144+2*j}:{145+2*j}], v8 offset:{YS+32*j}")
    def rdp(j):
        for p in range(4):
            a(f"ds_read_b128 {vr(80+16*j+4*p)}, v7 offset:{16384*p + 1024*j}")
    rdp(0); rdp(1)
    a("v_lshlrev_b32 v152, 16, v12\nv_and_b32 v153, 0xffff0000, v12\nv_lshlrev_b32 v154, 16, v13\nv_and_b32 v155, 0xffff0000, v13")
    a("s_waitcnt lgkmcnt(8)")
    for j in range(4):
        for h in range(2):
            a(f"v_lshlrev_b32 v{160+4*j+2*h}, 16, v{248+2*j+h}")
            a(f"v_and_b32 v{161+4*j+2*h}, 0xffff0000, v{248+2*j+h}")
            a(f"v_lshlrev_b32 v{176+4*j+2*h}, 16, v{144+2*j+h}")
            a(f"v_and_b32 v{177+4*j+2*h}, 0xffff0000, v{144+2*j+h}")
    for i in range(16):
        a(f"v_add_f32 v{160+i}, v{160+i}, v{176+i}")
    for i in range(8):
        a(f"v_cvt_pk_bf16_f32 v{176+i}, v{160+2*i}, v{161+2*i}")
    for i in range(8):
        a(f"v_lshlrev_b32 v{160+2*i}, 16, v{176+i}")
        a(f"v_and_b32 v{161+2*i}, 0xffff0000, v{176+i}")
    for j in range(4):
        a(f"s_waitcnt lgkmcnt({4 if j < 3 else 0})")
        if j < 2:
            rdp(j + 2)
        b = 80 + 16*j
        for i in range(4):
            a(f"v_add_f32 v{b+i}, v{b+i}, v{b+4+i}")
            a(f"v_add_f32 v{b+8+i}, v{b+8+i}, v{b+12+i}")
        for i in range(4):
            a(f"v_add_f32 v{b+i}, v{b+i}, v{b+8+i}")
        def rnd():
            a(f"v_cvt_pk_bf16_f32 v{b+4}, v{b}, v{b+1}")
            a(f"v_cvt_pk_bf16_f32 v{b+5}, v{b+2}, v{b+3}")
        def unp():
            a(f"v_lshlrev_b32 v{b}, 16, v{b+4}\nv_and_b32 v{b+1}, 0xffff0000, v{b+4}")
            a(f"v_lshlrev_b32 v{b+2}, 16, v{b+5}\nv_and_b32 v{b+3}, 0xffff0000, v{b+5}")
        rnd(); unp()
        for i in range(4):
            a(f"v_add_f32 v{b+i}, v{b+i}, v{152+i}")
        rnd(); unp()
        for i in range(4):
            a(f"v_add_f32 v{b+i}, v{160+4*j+i}, v{b+i}")
        rnd()
        a(f"buffer_store_dwordx2 v[{b+4}:{b+5}], v10, s[32:35], s10 offen")
        a("s_add_u32 s10, s10, 14336")
    st()
    a("s_waitcnt vmcnt(0)")
    st()
    st.dump("s2", int(os.environ.get("SWG", "0")), "s3", int(os.environ.get("SWAVE", "0")), "L_end3")
    a("s_branch L_end3")
    gen_conv(a)
    a.label("L_end3")
    a("s_mov_b64 exec, -1")
    rt_end(a, 3)
    a.label("L_exit3")
    a("s_endpgm")
    return a.text()
```

```python
import sys
from gen_common import *
from gen_k1 import gen_k1
from gen_k2 import gen_k2, K2GRID
from gen_k3 import gen_k3
ref = open("cdna_kernels/" + NAME + ".s.ref").read().split("\n")
hdr = [l for l in ref if l.startswith(";") and "@launch" not in l]
out = "\n".join(hdr) + "\n"
out += f"; @launch kernel=prep_kernel grid=({226+C1N},1,1) block=(256,1,1) lds=53504\n"
out += f"; @launch kernel=mid_kernel grid=({K2GRID},1,1) block=(256,1,1) lds=81920\n"
out += f"; @launch kernel={NAME}_kernel grid=(448,1,1) block=(256,1,1) lds=75776\n"
out += '.amdgcn_target "amdgcn-amd-amdhsa--gfx950"\n.text\n'
out += gen_k1() + gen_k2() + gen_k3()
out += '.section .rodata,"a"\n'
out += kdesc("prep_kernel", 136) + kdesc("mid_kernel", 256) + kdesc(NAME + "_kernel", 256)
dst = sys.argv[1] if len(sys.argv) > 1 else "cdna_kernels/" + NAME + ".s"
open(dst, "w").write(out)
print("written", dst, len(out))
```
